```python
import torch

def _softmax(x, axis=-1):
    return torch.softmax(x, dim=axis)
def _gelu(x):
    return torch.nn.functional.gelu(x, approximate="tanh")
def _silu(x):
    return torch.nn.functional.silu(x)
def _sigmoid(x):
    return torch.sigmoid(x)
def _layernorm(x, axis=-1, eps=1e-5):
    m = x.mean(dim=axis, keepdim=True)
    v = x.var(dim=axis, keepdim=True, unbiased=False)
    return (x - m) / torch.sqrt(v + eps)
def _scatter_add(tgt, idx, src, axis=0):
    return tgt.clone().index_add_(axis, idx, src)
def _segment_sum(src, seg, n):
    out = torch.zeros((n,) + src.shape[1:], dtype=src.dtype)
    return out.index_add_(0, seg, src)
def _pad(x, pw):
    flat = tuple(v for pair in reversed(pw) for v in pair)
    return torch.nn.functional.pad(x, flat)

kernel_name = 'gated_mix__ssm_conv_h3__dense_activation_squared_relu__prompt'

def setup_inputs():

    _w = (lambda a: (lambda t: t.to(torch.bfloat16) if t.is_floating_point() else t)(torch.as_tensor(a)))
    def _A_setup():
        B, S, D = 1, 2048, 512
        ks = 4
        return {
            "q": _w((lambda *s: torch.randn(*s, dtype=torch.bfloat16) * 0.05)(B, S, D)),
            "k": _w((lambda *s: torch.randn(*s, dtype=torch.bfloat16) * 0.4)(B, S, D)),
            "v": _w((lambda *s: torch.randn(*s, dtype=torch.bfloat16) * 0.4)(B, S, D)),
            "shift_k": _w((lambda *s: torch.randn(*s, dtype=torch.bfloat16) * 0.4)(D, ks) * 0.5),
            "ssm_k": _w((lambda *s: torch.randn(*s, dtype=torch.bfloat16) * 1.6)(D, S) * (1.0 / S ** 0.5)),
            "ssm_D": _w((lambda *s: torch.randn(*s, dtype=torch.bfloat16) * 0.4)(D)),
        }
    _A_in = _A_setup()

    def _B_setup():
        B, S, D, F = 1, 2048, 512, 1792
        return {
            "x": _w((lambda *s: torch.randn(*s, dtype=torch.bfloat16) * 0.05)(B, S, D)),
            "w1": _w((lambda *s: torch.randn(*s, dtype=torch.bfloat16) * 0.05)(D, F)),
            "b1": _w((lambda *s: torch.randn(*s, dtype=torch.bfloat16) * 0.05)(F)),
            "w2": _w((lambda *s: torch.randn(*s, dtype=torch.bfloat16) * 0.05)(F, D)),
            "b2": _w((lambda *s: torch.randn(*s, dtype=torch.bfloat16) * 0.05)(D)),
        }
    _B_in = _B_setup()

    return {
        "A_q": _A_in["q"],
        "A_k": _A_in["k"],
        "A_v": _A_in["v"],
        "A_shift_k": _A_in["shift_k"],
        "A_ssm_k": _A_in["ssm_k"],
        "A_ssm_D": _A_in["ssm_D"],
        "B_x": _B_in["x"],
        "B_w1": _B_in["w1"],
        "B_b1": _B_in["b1"],
        "B_w2": _B_in["w2"],
        "B_b2": _B_in["b2"],
        "gate_w": _w((lambda *s: torch.randn(*s, dtype=torch.bfloat16) * 0.05)(512) * 16.0),
    }

def reference(A_q, A_k, A_v, A_shift_k, A_ssm_k, A_ssm_D, B_x, B_w1, B_b1, B_w2, B_b2, gate_w):
    def _A_ref(q, k, v, shift_k, ssm_k, ssm_D):
        B, S, D = q.shape
        ks = shift_k.shape[-1]
        k_pad = _pad(k, ((0, 0), (ks - 1, 0), (0, 0)))
        k_shift = torch.zeros_like(k)
        for t in range(ks):
            k_shift = k_shift + k_pad[:, t:t + S, :] * shift_k[:, ks - 1 - t][None, None, :]
        kv = k_shift * v
        L = 2 * S
        kv_pad = _pad(kv, ((0, 0), (0, S), (0, 0)))
        kf_pad = _pad(ssm_k, ((0, 0), (0, S)))
        kv_f = (lambda x, axes=(-2,-1): torch.fft.rfft2(x.float(), dim=axes))(kv_pad[:, None, :, :], axes=(1, 2))
        kf_f = (lambda x, axes=(-2,-1): torch.fft.rfft2(x.float(), dim=axes))(kf_pad[:, None, :], axes=(1, 2))
        kf_f = (lambda x, *d: x.permute(*d))(kf_f, 1, 2, 0)
        y_f = kv_f * kf_f[None, :, :, :]
        y = (lambda x, s, axes=(-2,-1): torch.fft.irfft2(x, s=s, dim=axes).to(torch.bfloat16))(y_f, (1, L), axes=(1, 2))[:, 0, :S, :]
        y = y + kv * ssm_D[None, None, :]
        return q * y

    def _B_ref(x, w1, b1, w2, b2):
        h = torch.einsum("bsd,df->bsf", x, w1) + b1
        zero = torch.zeros_like(h)
        r = torch.where(h > zero, h, zero)
        h = r * r
        out = torch.einsum("bsf,fd->bsd", h, w2) + b2
        return out

    x = A_q
    g = _sigmoid((x * gate_w).sum(-1, keepdims=True))
    a = _A_ref(x, A_k, A_v, A_shift_k, A_ssm_k, A_ssm_D)
    b = _B_ref(x, B_w1, B_b1, B_w2, B_b2)
    return g * a + (1 - g) * b
```

```python
import re

REG_RE = re.compile(r'\b([vsa])\[(\d+):(\d+)\]|\b([vsa])(\d+)\b|\b(vcc|exec|m0|scc)\b')

def regs_of(tok):
    out = set()
    for m in REG_RE.finditer(tok):
        if m.group(1):
            for i in range(int(m.group(2)), int(m.group(3)) + 1):
                out.add((m.group(1), i))
        elif m.group(4):
            out.add((m.group(4), int(m.group(5))))
        else:
            out.add(('x', m.group(6)))
    return out

TRANS = ('v_exp_f32', 'v_log_f32', 'v_rcp_f32', 'v_rsq_f32', 'v_sqrt_f32', 'v_sin_f32', 'v_cos_f32')

class Ins:
    def __init__(self, text):
        self.text = text
        t = text.split(';')[0].strip()
        self.is_label = t.endswith(':')
        self.op = t.split()[0] if t else ''
        rest = t[len(self.op):].strip()
        self.ops = [x.strip() for x in rest.split(',')] if rest else []
        op = self.op
        self.kind = 'other'
        self.defs = set(); self.uses = set()
        self.srcC = set(); self.srcAB = set()
        self.store_data = set()
        if self.is_label or not t or t.startswith('.'):
            self.kind = 'none'; return
        if op.startswith('v_mfma'):
            self.kind = 'mfma'
            self.defs = regs_of(self.ops[0])
            self.srcAB = regs_of(self.ops[1]) | regs_of(self.ops[2])
            self.srcC = regs_of(self.ops[3])
            self.uses = self.srcAB | self.srcC
            self.passes = 8 if '32x32' in op else 4
        elif op.startswith('v_'):
            self.kind = 'valu'
            nd = 1
            if op.startswith('v_cmp'):
                self.defs = regs_of(self.ops[0])
                for o in self.ops[1:]: self.uses |= regs_of(o)
            elif op.startswith('v_readfirstlane') or op.startswith('v_readlane'):
                self.defs = regs_of(self.ops[0])
                for o in self.ops[1:]: self.uses |= regs_of(o)
            elif op.startswith('v_add_co') or op.startswith('v_sub_co') or op.startswith('v_addc_co'):
                self.defs = regs_of(self.ops[0]) | regs_of(self.ops[1])
                for o in self.ops[2:]: self.uses |= regs_of(o)
            elif op.startswith('v_permlane') or op.startswith('v_swap'):
                self.defs = regs_of(self.ops[0]) | regs_of(self.ops[1])
                self.uses = set(self.defs)
            else:
                self.defs = regs_of(self.ops[0])
                for o in self.ops[1:]: self.uses |= regs_of(o)
                if op.startswith('v_fmac') or op.startswith('v_dot2c') or op.startswith('v_mac') or op.startswith('v_pk_fmac'):
                    self.uses |= regs_of(self.ops[0])
                if op.startswith('v_cndmask') and len(self.ops) == 3:
                    self.uses.add(('x', 'vcc'))
        elif op.startswith('buffer_') or op.startswith('global_'):
            self.kind = 'vmem'
            lds = bool(re.search(r'\blds\b', t))
            self.lds_dma = lds
            if 'store' in op:
                if op.startswith('buffer_'):
                    self.store_data = regs_of(self.ops[0])
                else:
                    self.store_data = regs_of(self.ops[1])
                for o in self.ops: self.uses |= regs_of(o)
                self.wide = ('x4' in op or 'x3' in op)
            elif 'atomic' in op:
                for o in self.ops: self.uses |= regs_of(o)
                if re.search(r'\bsc0\b', t): self.defs = regs_of(self.ops[0])
            elif lds:
                for o in self.ops: self.uses |= regs_of(o)
                self.uses.add(('x', 'm0'))
            else:
                self.defs = regs_of(self.ops[0])
                for o in self.ops[1:]: self.uses |= regs_of(o)
        elif op.startswith('ds_'):
            self.kind = 'ds'
            if 'write' in op or 'add' in op and 'rtn' not in op:
                for o in self.ops: self.uses |= regs_of(o)
            else:
                self.defs = regs_of(self.ops[0])
                for o in self.ops[1:]: self.uses |= regs_of(o)
        elif op.startswith('s_'):
            self.kind = 'salu'
            if op in ('s_waitcnt', 's_barrier', 's_endpgm', 's_nop', 's_branch', 's_setprio', 's_sleep') or op.startswith('s_cbranch'):
                pass
            elif op.startswith('s_cmp') or op.startswith('s_bitcmp'):
                for o in self.ops: self.uses |= regs_of(o)
                self.defs = {('x', 'scc')}
            else:
                self.defs = regs_of(self.ops[0])
                for o in self.ops[1:]: self.uses |= regs_of(o)
                if 'saveexec' in op:
                    self.defs.add(('x', 'exec'))
    def states(self):
        if self.kind == 'none': return 0
        if self.op == 's_nop':
            return int(self.ops[0], 0) + 1
        return 1

def check(lines, name=''):
    ins = [Ins(l) for l in lines]
    probs = []
    n = len(ins)
    for i, a in enumerate(ins):
        if a.kind == 'none': continue
        dist = 0
        for j in range(i + 1, n):
            b = ins[j]
            if b.kind == 'none':
                continue
            if dist >= 24: break
            need = 0; why = ''
            def req(k, w):
                nonlocal need, why
                if k > need: need, why = k, w
            vdefs = {r for r in a.defs if r[0] in 'va'}
            sdefs = {r for r in a.defs if r[0] == 's' or r == ('x', 'vcc')}
            if a.kind == 'valu':
                if b.kind == 'mfma' and vdefs & b.uses: req(2, 'VALU->MFMA')
                if b.kind == 'valu' and (b.op.startswith('v_readfirstlane') or b.op.startswith('v_readlane')) and vdefs & b.uses: req(1, 'VALU->readlane')
                if b.kind == 'vmem' and sdefs & b.uses: req(5, 'VALU sgpr->VMEM')
                if b.kind == 'valu' and sdefs & b.uses: req(2, 'VALU sgpr->VALU')
                if a.op in TRANS and b.kind == 'valu' and vdefs & b.uses: req(1, 'trans')
                if a.op.startswith('v_dot') and b.kind in ('valu', 'mfma', 'vmem', 'ds'):
                    if b.op == a.op:
                        ab = set()
                        for o in b.ops[1:3]: ab |= regs_of(o)
                        if vdefs & ab: req(3, 'dot->dot AB')
                    elif vdefs & (b.uses | b.defs): req(3, 'dot->other')
                if b.kind == 'valu' and ('dpp' in b.text or 'row_' in b.text or 'quad_perm' in b.text or b.op.startswith('v_permlane')) and vdefs & b.uses: req(2, 'VALU->DPP')
                if ('x', 'exec') in a.defs and b.kind == 'mfma': req(4, 'VALU exec->MFMA')
            if a.kind == 'mfma':
                lat = 8 if a.passes == 4 else 12
                if b.kind == 'mfma':
                    if vdefs & b.srcAB: req(lat, 'MFMA D->MFMA AB')
                    if vdefs & b.srcC and not (b.srcC == a.defs and b.passes == a.passes): req(6 if a.passes == 4 else 10, 'MFMA D->MFMA C partial')
                elif b.kind in ('valu',) and vdefs & (b.uses | b.defs): req(lat, 'MFMA D->VALU')
                elif b.kind in ('vmem', 'ds') and vdefs & (b.uses | b.defs): req(lat, 'MFMA D->mem')
                if b.kind == 'valu' and a.srcC & b.defs: req(3 if a.passes == 4 else 7, 'MFMA C WAR')
            if a.kind == 'vmem' and a.store_data and getattr(a, 'wide', False):
                if b.kind == 'valu' and a.store_data & b.defs: req(2, 'store data WAR valu')
                elif a.store_data & b.defs: req(1, 'store data WAR')
            if a.kind == 'salu' and ('x', 'm0') in a.defs and b.kind == 'vmem' and getattr(b, 'lds_dma', False): req(1, 'm0->dma')
            if need > dist:
                probs.append(f'{name}: line {i}: "{a.text.strip()}" -> line {j}: "{b.text.strip()}" needs {need} has {dist} ({why})')
            dist += b.states()
            if b.op in ('s_branch', 's_endpgm'): break
    return probs

class K:
    def __init__(self, name):
        self.name = name
        self.lines = []
    def __call__(self, s):
        for l in s.split('\n'):
            if l.strip():
                self.lines.append('    ' + l.strip() if not l.strip().endswith(':') else l.strip())
    def c(self, s):
        self.lines.append('    ; ' + s)
    def label(self, s):
        self.lines.append(s + ':')
    def nop(self, n):
        while n > 0:
            k = min(n, 16)
            self.lines.append(f'    s_nop {k-1}')
            n -= k
    def text(self):
        return '\n'.join(self.lines)

def kernel_text(k):
    return (f'.globl {k.name}\n.p2align 8\n.type {k.name},@function\n{k.name}:\n' + k.text() + '\n')

def descriptor(name, vgpr=256, sgpr=102, accum=None):
    accum = accum or ((vgpr + 3) // 4 * 4)
    return f'''.p2align 6
.amdhsa_kernel {name}
  .amdhsa_next_free_vgpr {vgpr}
  .amdhsa_next_free_sgpr {sgpr}
  .amdhsa_accum_offset {accum}
  .amdhsa_group_segment_fixed_size 0
  .amdhsa_kernarg_size 120
  .amdhsa_user_sgpr_count 2
  .amdhsa_user_sgpr_kernarg_segment_ptr 1
  .amdhsa_system_sgpr_workgroup_id_x 1
.end_amdhsa_kernel
'''
```

```python
from asmlib import *

HF_OFF = 0
HF_BYTES = 32*56*4*1024
UT_OFF = 0x800000
YT_OFF = 0xA00000
G_OFF  = 0xC00000
K1_LDS = 131072 + 4*5120

def srd_consts(k, base, nbytes):
    k(f's_mov_b32 s{base+2}, {nbytes}')
    k(f's_mov_b32 s{base+3}, 0x00020000')

def gen_k1(name='k1_kernel', store_mod=''):
    k = K(name)
    SX, SW1, SK_, SV, SHF, SUT, SSK, SB1, SGW, SG = 8, 12, 16, 20, 24, 28, 32, 36, 40, 44
    k('s_cmp_ge_u32 s2, 256')
    k(f's_cbranch_scc1 L_{name}_end')
    k(f's_load_dwordx2 s[{SX}:{SX+1}], s[0:1], 0')
    k(f's_load_dwordx2 s[{SW1}:{SW1+1}], s[0:1], 56')
    k(f's_load_dwordx2 s[{SK_}:{SK_+1}], s[0:1], 8')
    k(f's_load_dwordx2 s[{SV}:{SV+1}], s[0:1], 16')
    k(f's_load_dwordx2 s[{SHF}:{SHF+1}], s[0:1], 112')
    k(f's_load_dwordx2 s[{SSK}:{SSK+1}], s[0:1], 24')
    k(f's_load_dwordx2 s[{SB1}:{SB1+1}], s[0:1], 64')
    k(f's_load_dwordx2 s[{SGW}:{SGW+1}], s[0:1], 88')
    k('v_lshrrev_b32 v1, 6, v0')
    k('s_and_b32 s3, s2, 7')
    k('s_lshr_b32 s4, s2, 3')
    k('v_readfirstlane_b32 s5, v1')
    k('v_and_b32 v1, 63, v0')
    k('v_and_b32 v2, 15, v0')
    k('v_bfe_u32 v3, v0, 4, 2')
    srd_consts(k, SX, 2097152)
    srd_consts(k, SW1, 512*3584)
    srd_consts(k, SK_, 2097152)
    srd_consts(k, SV, 2097152)
    srd_consts(k, SHF, HF_BYTES)
    srd_consts(k, SUT, 512*4096)
    srd_consts(k, SSK, 4096)
    srd_consts(k, SB1, 3584)
    srd_consts(k, SGW, 1024)
    srd_consts(k, SG, 8192)
    k('s_and_b32 s6, s3, 3')
    k('s_lshl_b32 s6, s6, 2')
    k('s_and_b32 s7, s4, 3')
    k('s_add_u32 s48, s6, s7')
    k('s_lshr_b32 s6, s3, 2')
    k('s_mul_i32 s6, s6, 7')
    k('s_lshr_b32 s7, s4, 2')
    k('s_add_u32 s49, s6, s7')
    k('s_waitcnt lgkmcnt(0)')
    k(f's_add_u32 s{SUT}, s{SHF}, {UT_OFF}')
    k(f's_addc_u32 s{SUT+1}, s{SHF+1}, 0')
    k(f's_add_u32 s{SG}, s{SHF}, {G_OFF}')
    k(f's_addc_u32 s{SG+1}, s{SHF+1}, 0')
    k('s_cmp_ge_u32 s5, 4')
    k(f's_cbranch_scc1 L_{name}_hi')

    k.c('kv phase')
    k('s_mul_i32 s50, s5, 5120')
    k('s_add_u32 s50, s50, 131072')
    k('s_lshl_b32 s6, s4, 6')
    k('s_lshl_b32 s7, s5, 4')
    k('s_add_u32 s51, s6, s7')
    k('s_sub_u32 s6, s51, 8')
    k('s_lshl_b32 s6, s6, 10')
    k('s_lshl_b32 s7, s3, 7')
    k('s_add_u32 s6, s6, s7')
    k('v_lshrrev_b32 v4, 3, v1')
    k('v_lshlrev_b32 v4, 10, v4')
    k('v_and_b32 v5, 7, v1')
    k('v_and_b32 v6, 1, v3')
    k('v_lshlrev_b32 v6, 2, v6')
    k('v_xor_b32 v5, v5, v6')
    k('v_lshlrev_b32 v5, 4, v5')
    k('v_add_u32 v4, v4, v5')
    k('v_add_u32 v4, s6, v4')
    k('s_mov_b32 m0, s50')
    k('v_add_u32 v5, 8192, v4')
    k(f'buffer_load_dwordx4 v4, s[{SK_}:{SK_+3}], 0 offen lds')
    k('s_add_u32 m0, s50, 1024')
    k('v_add_u32 v6, 16384, v4')
    k(f'buffer_load_dwordx4 v5, s[{SK_}:{SK_+3}], 0 offen lds')
    k('s_add_u32 m0, s50, 2048')
    k('s_nop 0')
    k(f'buffer_load_dwordx4 v6, s[{SK_}:{SK_+3}], 0 offen lds')
    k('s_add_u32 m0, s50, 3072')
    k('s_nop 0')
    k(f'buffer_load_dwordx4 v5, s[{SV}:{SV+3}], 0 offen lds')
    k('s_add_u32 m0, s50, 4096')
    k('s_nop 0')
    k(f'buffer_load_dwordx4 v6, s[{SV}:{SV+3}], 0 offen lds')
    k('s_lshl_b32 s6, s3, 6')
    k('v_add_u32 v7, s6, v1')
    k('v_lshlrev_b32 v8, 3, v7')
    k(f'buffer_load_dwordx2 v[10:11], v8, s[{SSK}:{SSK+3}], 0 offen')
    k('s_and_b32 s52, s5, 1')
    k('s_lshr_b32 s53, s5, 1')
    k('s_lshl_b32 s6, s49, 8')
    k('s_lshl_b32 s7, s52, 7')
    k('s_add_u32 s6, s6, s7')
    k('v_lshlrev_b32 v9, 3, v3')
    k('v_add_u32 v9, s6, v9')
    for ft in range(4):
        k(f'buffer_load_dwordx2 v[{208+2*ft}:{209+2*ft}], v9, s[{SB1}:{SB1+3}], 0 offen offset:{ft*32}')
    k('v_lshrrev_b32 v12, 2, v2')
    k('v_lshlrev_b32 v12, 7, v12')
    k('v_lshlrev_b32 v13, 1, v3')
    k('v_bfe_u32 v14, v2, 1, 1')
    k('v_add_u32 v13, v13, v14')
    k('v_lshrrev_b32 v14, 3, v2')
    k('v_lshlrev_b32 v14, 2, v14')
    k('v_xor_b32 v13, v13, v14')
    k('v_lshlrev_b32 v13, 4, v13')
    k('v_add_u32 v12, v12, v13')
    k('v_and_b32 v13, 1, v2')
    k('v_lshlrev_b32 v13, 3, v13')
    k('v_add_u32 v12, v12, v13')
    k('s_add_u32 s6, s50, 512')
    k('v_add_u32 v12, s6, v12')
    k('s_sub_u32 s6, 2032, s51')
    k('s_lshl_b32 s6, s6, 1')
    k('v_lshlrev_b32 v15, 12, v7')
    k('v_add_u32 v15, s6, v15')
    k('v_lshrrev_b32 v20, 2, v2')
    k('v_lshlrev_b32 v21, 3, v3')
    k('v_add_u32 v21, v21, v20')
    k('v_lshlrev_b32 v21, 8, v21')
    k('v_and_b32 v22, 1, v3')
    k('v_lshlrev_b32 v22, 2, v22')
    k('v_add_u32 v22, v22, v20')
    k('s_lshl_b32 s6, s52, 2')
    k('v_xor_b32 v22, s6, v22')
    k('v_lshlrev_b32 v22, 5, v22')
    k('v_bfe_u32 v23, v2, 1, 1')
    k('v_lshlrev_b32 v23, 4, v23')
    k('v_and_b32 v24, 1, v2')
    k('v_lshlrev_b32 v24, 3, v24')
    k('v_add_u32 v21, v21, v23')
    k('v_add_u32 v21, v21, v24')
    for ft in range(4):
        k(f'v_xor_b32 v23, {ft*32}, v22')
        k(f'v_add_u32 v{216+ft}, v21, v23')
        k(f'v_add_u32 v{220+ft}, 0x10000, v{216+ft}')
    k('v_and_b32 v20, 7, v2')
    k('v_xor_b32 v20, v20, v3')
    k('v_lshlrev_b32 v20, 4, v20')
    k('v_lshlrev_b32 v21, 7, v2')
    k('v_add_u32 v20, v20, v21')
    k('s_lshl_b32 s6, s53, 13')
    k('v_add_u32 v224, s6, v20')
    k('v_xor_b32 v225, 64, v224')
    k('v_add_u32 v226, 0x10000, v224')
    k('v_add_u32 v227, 0x10000, v225')
    k('s_waitcnt vmcnt(0)')
    for b in range(5):
        k(f'ds_read_b64_tr_b16 v[{64+2*b}:{65+2*b}], v12 offset:{b*512}')
    for b in range(4):
        k(f'ds_read_b64_tr_b16 v[{80+2*b}:{81+2*b}], v12 offset:{2560+b*512}')
    k('v_alignbit_b32 v16, v10, v10, 16')
    k('v_alignbit_b32 v17, v11, v11, 16')
    for ft in range(4):
        k(f'v_lshlrev_b32 v{192+4*ft}, 16, v{208+2*ft}')
        k(f'v_and_b32 v{193+4*ft}, 0xffff0000, v{208+2*ft}')
        k(f'v_lshlrev_b32 v{194+4*ft}, 16, v{209+2*ft}')
        k(f'v_and_b32 v{195+4*ft}, 0xffff0000, v{209+2*ft}')
    k('s_waitcnt lgkmcnt(4)')
    for a in range(1, 10):
        k(f'v_alignbit_b32 v{90+a}, v{64+a}, v{63+a}, 16')
    for sg in range(16):
        t = sg + 4
        a = t // 2
        if t & 1:
            k(f'v_dot2_f32_bf16 v{100+sg}, v{64+a}, v16, 0')
        else:
            k(f'v_dot2_f32_bf16 v{100+sg}, v{90+a}, v16, 0')
    for sg in range(16):
        t = sg + 4
        a = t // 2
        if t & 1:
            k(f'v_dot2_f32_bf16 v{100+sg}, v{64+a-1}, v17, v{100+sg}')
        else:
            k(f'v_dot2_f32_bf16 v{100+sg}, v{90+a-1}, v17, v{100+sg}')
    k('s_waitcnt lgkmcnt(0)')
    for p in range(8):
        k(f'v_lshlrev_b32 v{120+2*p}, 16, v{80+p}')
        k(f'v_and_b32 v{121+2*p}, 0xffff0000, v{80+p}')
    for sg in range(16):
        k(f'v_mul_f32 v{100+sg}, v{100+sg}, v{120+sg}')
    for p in range(8):
        k(f'v_cvt_pk_bf16_f32 v{140+p}, v{100+15-2*p}, v{100+14-2*p}')
    k(f'buffer_store_dwordx4 v[140:143], v15, s[{SUT}:{SUT+3}], 0 offen {store_mod}')
    k(f'buffer_store_dwordx4 v[144:147], v15, s[{SUT}:{SUT+3}], 0 offen offset:16 {store_mod}')
    k('s_cmp_ge_u32 s4, 28')
    k(f's_cbranch_scc1 L_{name}_end')

    k.c('GEMM1 compute waves')
    ACC = 64
    PA, PB, QA, QB = 128, 144, 160, 176
    def reads(s, ks, A, B):
        slot = s % 4
        half = slot >> 1
        off = (slot & 1) * 32768
        r = []
        vb = 224 + 2*half + ks
        def rb(tt): return f'ds_read_b128 v[{B+4*tt}:{B+4*tt+3}], v{vb} offset:{off+tt*2048}'
        def ra(ft, h): return f'ds_read_b64_tr_b16 v[{A+4*ft+2*h}:{A+4*ft+2*h+1}], v{216+4*half+ft} offset:{off+16384+ks*8192+h*1024}'
        r = [rb(0), ra(0,0), ra(0,1), rb(1), rb(2), rb(3), ra(1,0), ra(1,1), ra(2,0), ra(2,1), ra(3,0), ra(3,1)]
        return r
    k('s_lshl_b32 s6, s48, 1')
    k('s_add_u32 s6, s6, s53')
    k('s_mul_i32 s6, s6, 56')
    k('s_lshl_b32 s7, s49, 2')
    k('s_add_u32 s6, s6, s7')
    k('s_lshl_b32 s7, s52, 1')
    k('s_add_u32 s6, s6, s7')
    k('s_lshl_b32 s6, s6, 12')
    k('v_lshlrev_b32 v228, 4, v1')
    k('v_add_u32 v228, s6, v228')
    k('v_add_u32 v229, 4096, v228')
    k('s_barrier')
    for r in reads(0, 0, PA, PB): k(r)
    k('s_waitcnt lgkmcnt(0)')
    for s in range(8):
        for ks in range(2):
            A, B = (PA, PB) if ks == 0 else (QA, QB)
            nA, nB = (QA, QB) if ks == 0 else (PA, PB)
            if ks == 0: rd = reads(s, 1, nA, nB)
            elif s < 7: rd = reads(s+1, 0, nA, nB)
            else: rd = []
            rd = list(rd)
            idx = 0
            for ft in range(4):
                for tt in range(4):
                    d = ACC + (ft*4+tt)*4
                    c = f'v[{192+4*ft}:{195+4*ft}]' if (s == 0 and ks == 0) else f'v[{d}:{d+3}]'
                    k(f'v_mfma_f32_16x16x32_bf16 v[{d}:{d+3}], v[{A+4*ft}:{A+4*ft+3}], v[{B+4*tt}:{B+4*tt+3}], {c}')
                    for _ in range(2):
                        if rd: k(rd.pop(0))
                    idx += 1
            if not (s == 7 and ks == 1):
                k('s_waitcnt lgkmcnt(0)')
            if ks == 0 and s < 7:
                k('s_barrier')
    k.nop(8)
    T = 128
    for kp in range(2):
        for tt in range(4):
            d0 = ACC + ((2*kp)*4+tt)*4
            d1 = ACC + ((2*kp+1)*4+tt)*4
            for d in (d0, d1):
                for r in range(4):
                    k(f'v_max_f32 v{d+r}, 0, v{d+r}')
            for d in (d0, d1):
                k(f'v_pk_mul_f32 v[{d}:{d+1}], v[{d}:{d+1}], v[{d}:{d+1}]')
                k(f'v_pk_mul_f32 v[{d+2}:{d+3}], v[{d+2}:{d+3}], v[{d+2}:{d+3}]')
            t = T + (kp*4+tt)*4
            k(f'v_cvt_pk_bf16_f32 v{t}, v{d0}, v{d0+1}')
            k(f'v_cvt_pk_bf16_f32 v{t+1}, v{d0+2}, v{d0+3}')
            k(f'v_cvt_pk_bf16_f32 v{t+2}, v{d1}, v{d1+1}')
            k(f'v_cvt_pk_bf16_f32 v{t+3}, v{d1+2}, v{d1+3}')
            k(f'buffer_store_dwordx4 v[{t}:{t+3}], v{228+kp}, s[{SHF}:{SHF+3}], 0 offen offset:{tt*1024} {store_mod}')
    k('s_endpgm')

    k.label(f'L_{name}_hi')
    k('s_sub_u32 s5, s5, 4')
    k('s_cmp_ge_u32 s4, 28')
    k(f's_cbranch_scc1 L_{name}_gate')
    k.c('loader')
    k('s_lshl_b32 s6, s48, 7')
    k('s_lshl_b32 s7, s5, 5')
    k('s_add_u32 s6, s6, s7')
    k('s_lshl_b32 s6, s6, 10')
    k('v_lshrrev_b32 v8, 3, v1')
    k('v_and_b32 v9, 7, v1')
    k('v_xor_b32 v9, v9, v8')
    k('v_lshlrev_b32 v9, 4, v9')
    k('v_lshlrev_b32 v8, 10, v8')
    k('v_add_u32 v8, v8, v9')
    k('v_add_u32 v4, s6, v8')
    for jj in range(1, 4):
        k(f'v_add_u32 v{4+jj}, {jj*7168}, v4')
    k('s_lshl_b32 s6, s5, 4')
    k('s_mul_i32 s6, s6, 3584')
    k('s_lshl_b32 s7, s49, 8')
    k('s_add_u32 s6, s6, s7')
    k('v_lshlrev_b32 v12, 1, v3')
    k('v_xor_b32 v12, v12, v2')
    k('v_lshlrev_b32 v12, 4, v12')
    k('v_mul_u32_u24 v13, 3584, v3')
    k('v_add_u32 v12, v12, v13')
    k('v_add_u32 v8, s6, v12')
    k(f'v_add_u32 v9, {4*3584-1024}, v8')
    k('v_xor_b32 v12, 128, v8')
    k(f'v_add_u32 v10, {8*3584-2048}, v12')
    k(f'v_add_u32 v11, {12*3584-3072}, v12')
    k('s_lshl_b32 s50, s5, 12')
    def stage(s):
        slot = s % 4
        k(f's_add_u32 m0, s50, {slot*32768}')
        k(f's_mov_b32 s51, {s*128}')
        for jj in range(4):
            k(f'buffer_load_dwordx4 v{4+jj}, s[{SX}:{SX+3}], s51 offen offset:{jj*1024} lds')
        k(f's_add_u32 m0, s50, {slot*32768+16384}')
        k(f's_mov_b32 s51, {s*229376}')
        for jj in range(4):
            k(f'buffer_load_dwordx4 v{8+jj}, s[{SW1}:{SW1+3}], s51 offen offset:{jj*1024} lds')
    for s in range(4): stage(s)
    k('s_waitcnt vmcnt(24)')
    k('s_barrier')
    for s in range(7):
        n = 16 if s <= 4 else (8 if s == 5 else 0)
        k(f's_waitcnt vmcnt({n})')
        k('s_barrier')
        if s + 4 < 8: stage(s+4)
    k('s_endpgm')

    k.label(f'L_{name}_gate')
    k('s_lshl_b32 s6, s3, 2')
    k('s_add_u32 s6, s6, s4')
    k('s_sub_u32 s6, s6, 28')
    k('s_lshl_b32 s6, s6, 6')
    k('s_lshl_b32 s7, s5, 4')
    k('s_add_u32 s6, s6, s7')
    k('v_add_u32 v4, s6, v2')
    k('v_lshlrev_b32 v5, 10, v4')
    k('v_lshlrev_b32 v6, 4, v3')
    k('v_add_u32 v5, v5, v6')
    for s in range(16):
        k(f'buffer_load_dwordx4 v[{64+4*s}:{67+4*s}], v5, s[{SX}:{SX+3}], 0 offen offset:{s*64}')
    for s in range(16):
        k(f'buffer_load_dwordx4 v[{128+4*s}:{131+4*s}], v6, s[{SGW}:{SGW+3}], 0 offen offset:{s*64}')
    k('v_mov_b32 v8, 0\nv_mov_b32 v9, 0\nv_mov_b32 v10, 0\nv_mov_b32 v11, 0')
    k('v_lshlrev_b32 v7, 2, v4')
    k('s_waitcnt vmcnt(0)')
    for s in range(16):
        k(f'v_mfma_f32_16x16x32_bf16 v[8:11], v[{128+4*s}:{131+4*s}], v[{64+4*s}:{67+4*s}], v[8:11]')
    k.nop(8)
    k('v_mul_f32 v8, 0xbfb8aa3b, v8')
    k('v_exp_f32 v8, v8')
    k('s_nop 0')
    k('v_add_f32 v8, 1.0, v8')
    k('v_rcp_f32 v8, v8')
    k('v_cmp_gt_u32 vcc, 16, v1')
    k('s_and_saveexec_b64 s[52:53], vcc')
    k(f'buffer_store_dword v8, v7, s[{SG}:{SG+3}], 0 offen {store_mod}')
    k.label(f'L_{name}_end')
    k('s_endpgm')
    return k, 232, K1_LDS, 512

if __name__ == '__main__':
    k, v, lds, blk = gen_k1()
    for p in check(k.lines, k.name): print(p)
```

```python
from asmlib import *
from k1 import UT_OFF, YT_OFF, srd_consts

CH_LDS = 4*4160 + 4608
K2_LDS = 2*CH_LDS + 4*4096

def gen_k2(name='k2_kernel', store_mod=''):
    k = K(name)
    SH, SU, SY, SD = 8, 12, 16, 20
    k('s_cmp_ge_u32 s2, 256')
    k(f's_cbranch_scc1 L_{name}_end')
    k(f's_load_dwordx2 s[{SH}:{SH+1}], s[0:1], 32')
    k(f's_load_dwordx2 s[{SD}:{SD+1}], s[0:1], 40')
    k(f's_load_dwordx2 s[{SU}:{SU+1}], s[0:1], 112')
    k('v_lshrrev_b32 v1, 6, v0')
    k('s_and_b32 s3, s2, 7')
    k('s_lshr_b32 s4, s2, 3')
    k('v_readfirstlane_b32 s5, v1')
    k('v_and_b32 v1, 63, v0')
    k('v_and_b32 v2, 15, v0')
    k('v_bfe_u32 v3, v0, 4, 2')
    srd_consts(k, SH, 4096)
    srd_consts(k, SU, 4096)
    srd_consts(k, SY, 4096)
    srd_consts(k, SD, 1024)
    k('s_lshr_b32 s6, s5, 1')
    k('s_and_b32 s7, s5, 1')
    k('s_lshl_b32 s24, s3, 6')
    k('s_lshl_b32 s25, s4, 1')
    k('s_add_u32 s24, s24, s25')
    k('s_add_u32 s24, s24, s6')
    k('s_lshl_b32 s25, s24, 12')
    k(f's_mul_i32 s26, s6, {CH_LDS}')
    k('s_waitcnt lgkmcnt(0)')
    k(f's_add_u32 s{SH}, s{SH}, s25')
    k(f's_addc_u32 s{SH+1}, s{SH+1}, 0')
    k(f's_add_u32 s{SU}, s{SU}, s25')
    k(f's_addc_u32 s{SU+1}, s{SU+1}, 0')
    k(f's_add_u32 s{SY}, s{SU}, {YT_OFF}')
    k(f's_addc_u32 s{SY+1}, s{SU+1}, 0')
    k(f's_add_u32 s{SU}, s{SU}, {UT_OFF}')
    k(f's_addc_u32 s{SU+1}, s{SU+1}, 0')
    k('s_lshl_b32 s27, s7, 11')
    k('v_lshlrev_b32 v4, 4, v1')
    k('s_add_u32 s28, s26, s27')
    k(f's_add_u32 m0, s28, 16640')
    k('v_add_u32 v5, s27, v4')
    for z in range(2):
        k(f'buffer_load_dwordx4 v5, s[{SU}:{SU+3}], 0 offen offset:{z*1024} lds')
    k('s_lshl_b32 s28, s7, 2')
    k('s_sub_u32 s28, 32, s28')
    k('v_add_u32 v6, s28, v4')
    k('v_subrev_u32 v7, 2, v6')
    k('s_mul_i32 s28, s7, 8320')
    k('s_add_u32 s28, s28, s26')
    k('s_add_u32 m0, s28, 64')
    k('s_nop 0')
    for z in range(4):
        k(f'buffer_load_dwordx4 v6, s[{SH}:{SH+3}], 0 offen offset:{z*1024} lds')
    k(f's_add_u32 m0, s28, {64+4160}')
    k('s_nop 0')
    for z in range(4):
        k(f'buffer_load_dwordx4 v7, s[{SH}:{SH+3}], 0 offen offset:{z*1024} lds')
    k('v_bfe_u32 v8, v0, 5, 2')
    k('v_and_b32 v9, 31, v0')
    k('v_sub_u32 v10, v9, v8')
    k('v_subrev_u32 v10, 16, v10')
    k('v_lshlrev_b32 v10, 1, v10')
    k(f'buffer_load_ushort v11, v10, s[{SH}:{SH+3}], 0 offen')
    k('s_lshl_b32 s28, s24, 1')
    k('v_mov_b32 v12, s28')
    k(f'buffer_load_ushort v13, v12, s[{SD}:{SD+3}], 0 offen')
    k('v_mul_u32_u24 v8, 4160, v8')
    k('v_lshlrev_b32 v9, 1, v9')
    k('v_add_u32 v8, v8, v9')
    k('v_add_u32 v8, s26, v8')
    k('v_and_b32 v9, 127, v0')
    k('v_lshlrev_b32 v9, 2, v9')
    k(f's_add_u32 s28, s26, {16640+4096}')
    k('v_add_u32 v9, s28, v9')
    k('v_mov_b32 v14, 0')
    k('ds_write_b32 v9, v14')
    k('v_sub_u32 v14, 15, v2')
    k('v_and_b32 v15, 3, v14')
    k('v_lshrrev_b32 v14, 2, v14')
    k('v_mul_u32_u24 v15, 4160, v15')
    k('v_lshlrev_b32 v14, 3, v14')
    k('v_sub_u32 v15, v15, v14')
    k('v_lshlrev_b32 v14, 4, v3')
    k('v_add_u32 v15, v15, v14')
    k('s_lshl_b32 s29, s7, 8')
    k('s_add_u32 s28, s26, s29')
    k('s_add_u32 s28, s28, 32')
    k('v_add_u32 v20, s28, v15')
    k('v_lshlrev_b32 v15, 5, v2')
    k('v_sub_u32 v16, v14, v15')
    k(f's_add_u32 s28, s26, {16640+480}')
    k('s_add_u32 s28, s28, s29')
    k('v_add_u32 v21, s28, v16')
    k('v_lshlrev_b32 v16, 3, v3')
    k('v_add_u32 v16, v16, v15')
    k('v_add_u32 v22, s27, v16')
    k(f's_add_u32 s28, s26, {16640+4088-1536}')
    k('s_sub_u32 s28, s28, s27')
    k('v_sub_u32 v23, s28, v16')
    k('s_lshl_b32 s28, s5, 12')
    k(f's_add_u32 s28, s28, {2*CH_LDS}')
    k('v_add_u32 v24, s28, v4')
    k('v_xor_b32 v25, 4096, v24')
    k('s_waitcnt vmcnt(1)')
    k('ds_write_b16 v8, v11')
    k('s_waitcnt vmcnt(0) lgkmcnt(0)')
    k('v_lshlrev_b32 v13, 16, v13')
    k('s_barrier')
    ACC = 32
    PA, PB, QA, QB = 64, 96, 128, 160
    def reads(rr, A, B):
        def ra(a): return [f'ds_read_b64 v[{A+4*a+2*h}:{A+4*a+2*h+1}], v20 offset:{512*a+64*rr+8*h}' for h in range(2)]
        def rb(b): return [f'ds_read_b128 v[{B+4*b}:{B+4*b+3}], v21 offset:{512*(7-b)+64*rr}']
        r = rb(0)+ra(0)
        for b in range(1, 8): r += rb(b)
        for a in range(1, 8): r += ra(a)
        return r
    for r in reads(0, PA, PB): k(r)
    k('s_waitcnt lgkmcnt(0)')
    for rr in range(4):
        A, B = (PA, PB) if rr % 2 == 0 else (QA, QB)
        nA, nB = (QA, QB) if rr % 2 == 0 else (PA, PB)
        rd = reads(rr+1, nA, nB) if rr < 3 else []
        first = set()
        for a in range(8):
            for b in range(8-a):
                t = a+b
                d = ACC+4*t
                c = '0' if (rr == 0 and t not in first) else f'v[{d}:{d+3}]'
                first.add(t)
                k(f'v_mfma_f32_16x16x32_bf16 v[{d}:{d+3}], v[{A+4*a}:{A+4*a+3}], v[{B+4*b}:{B+4*b+3}], {c}')
                if rd: k(rd.pop(0))
        if rr < 3: k('s_waitcnt lgkmcnt(0)')
    k.nop(8)
    k('s_cmp_eq_u32 s7, 0')
    k(f's_cbranch_scc0 L_{name}_hw1')
    def epi(keep, give):
        for tau in range(4):
            d = ACC+4*(give+tau)
            k(f'ds_write_b128 v24, v[{d}:{d+3}] offset:{tau*1024}')
        for tau in range(4):
            k(f'ds_read_b64 v[{64+2*tau}:{65+2*tau}], v23 offset:{512*(3-tau)}')
        k('s_waitcnt lgkmcnt(0)')
        k('s_barrier')
        for tau in range(4):
            k(f'ds_read_b128 v[{80+4*tau}:{83+4*tau}], v25 offset:{tau*1024}')
        for tau in range(4):
            u = 96+4*tau
            k(f'v_and_b32 v{u}, 0xffff0000, v{65+2*tau}')
            k(f'v_lshlrev_b32 v{u+1}, 16, v{65+2*tau}')
            k(f'v_and_b32 v{u+2}, 0xffff0000, v{64+2*tau}')
            k(f'v_lshlrev_b32 v{u+3}, 16, v{64+2*tau}')
        for tau in range(4):
            d = ACC+4*(keep+tau); u = 96+4*tau
            for r in range(4):
                k(f'v_fmac_f32 v{d+r}, v{u+r}, v13')
        k('s_waitcnt lgkmcnt(0)')
        for tau in range(4):
            d = ACC+4*(keep+tau); p = 80+4*tau
            k(f'v_pk_add_f32 v[{d}:{d+1}], v[{d}:{d+1}], v[{p}:{p+1}]')
            k(f'v_pk_add_f32 v[{d+2}:{d+3}], v[{d+2}:{d+3}], v[{p+2}:{p+3}]')
            k(f'v_cvt_pk_bf16_f32 v{112+2*tau}, v{d}, v{d+1}')
            k(f'v_cvt_pk_bf16_f32 v{113+2*tau}, v{d+2}, v{d+3}')
            k(f'buffer_store_dwordx2 v[{112+2*tau}:{113+2*tau}], v22, s[{SY}:{SY+3}], 0 offen offset:{512*tau} {store_mod}')
        k('s_endpgm')
    epi(0, 4)
    k.label(f'L_{name}_hw1')
    epi(4, 0)
    k.label(f'L_{name}_end')
    k('s_endpgm')
    assert (2*CH_LDS) & 0x1000 == 0 or True
    return k, 192, K2_LDS, 256

if __name__ == '__main__':
    k, v, lds, blk = gen_k2()
    for p in check(k.lines, k.name): print(p)
```

```python
from asmlib import *
from k1 import HF_OFF, HF_BYTES, YT_OFF, G_OFF, srd_consts

K3_LDS = 65536 + 4*2048

def gen_k3(name='k3_kernel', store_mod=''):
    k = K(name)
    SHF, SW2, SQ, SY, SG, SB2, SO = 8, 12, 16, 20, 24, 28, 32
    k('s_cmp_ge_u32 s2, 256')
    k(f's_cbranch_scc1 L_{name}_end')
    k(f's_load_dwordx2 s[{SHF}:{SHF+1}], s[0:1], 112')
    k(f's_load_dwordx2 s[{SW2}:{SW2+1}], s[0:1], 72')
    k(f's_load_dwordx2 s[{SQ}:{SQ+1}], s[0:1], 0')
    k(f's_load_dwordx2 s[{SB2}:{SB2+1}], s[0:1], 80')
    k(f's_load_dwordx2 s[{SO}:{SO+1}], s[0:1], 96')
    k('v_lshrrev_b32 v1, 6, v0')
    k('s_and_b32 s3, s2, 7')
    k('s_lshr_b32 s4, s2, 3')
    k('v_readfirstlane_b32 s5, v1')
    k('v_and_b32 v1, 63, v0')
    k('v_and_b32 v2, 15, v0')
    k('v_bfe_u32 v3, v0, 4, 2')
    srd_consts(k, SHF, HF_BYTES)
    srd_consts(k, SW2, 1792*1024)
    srd_consts(k, SQ, 2097152)
    srd_consts(k, SY, 512*4096)
    srd_consts(k, SG, 8192)
    srd_consts(k, SB2, 1024)
    srd_consts(k, SO, 2097152)
    k('s_lshl_b32 s6, s3, 2')
    k('s_and_b32 s7, s4, 3')
    k('s_add_u32 s36, s6, s7')
    k('s_lshr_b32 s37, s4, 2')
    k('s_mul_i32 s38, s5, 14')
    k('s_mul_i32 s6, s36, 56')
    k('s_add_u32 s6, s6, s38')
    k('s_lshl_b32 s6, s6, 12')
    k('v_lshlrev_b32 v4, 4, v1')
    k('v_add_u32 v5, s6, v4')
    for tau in range(4):
        k(f's_add_u32 s{40+tau}, s5, {tau}')
        k(f's_and_b32 s{40+tau}, s{40+tau}, 3')
        k(f's_lshl_b32 s{40+tau}, s{40+tau}, 10')
    k('v_lshrrev_b32 v10, 3, v1')
    k('v_lshlrev_b32 v10, 10, v10')
    k('v_and_b32 v11, 7, v1')
    k('v_lshlrev_b32 v12, 1, v3')
    k('v_xor_b32 v11, v11, v12')
    k('v_lshlrev_b32 v11, 4, v11')
    k('v_add_u32 v10, v10, v11')
    k('s_lshl_b32 s39, s37, 7')
    k('v_add_u32 v6, s39, v10')
    for jj in range(1, 4):
        k(f'v_add_u32 v{6+jj}, {jj*7168}, v6')
    k('s_lshl_b32 s44, s38, 15')
    k('s_lshl_b32 s45, s5, 14')
    k('s_waitcnt lgkmcnt(0)')
    k(f's_add_u32 s{SY}, s{SHF}, {YT_OFF}')
    k(f's_addc_u32 s{SY+1}, s{SHF+1}, 0')
    k(f's_add_u32 s{SG}, s{SHF}, {G_OFF}')
    k(f's_addc_u32 s{SG+1}, s{SHF+1}, 0')
    BR = 128
    def issue(i):
        slot = i % 4
        k(f's_add_u32 m0, s45, {slot*4096}')
        k(f's_add_u32 s46, s44, {i*32768}')
        out = []
        for jj in range(4):
            out.append(f'buffer_load_dwordx4 v{6+jj}, s[{SW2}:{SW2+3}], s46 offen offset:{jj*1024} lds')
        return out
    def bload(i, tau):
        slot = i % 4
        b = BR + slot*16 + tau*4
        return f'buffer_load_dwordx4 v[{b}:{b+3}], v5, s[{SHF}:{SHF+3}], s{40+tau} offen'
    k('s_lshl_b32 s6, s36, 6')
    k('s_lshl_b32 s7, s5, 4')
    k('s_add_u32 s47, s6, s7')
    k('v_add_u32 v13, s47, v2')
    k('v_lshlrev_b32 v14, 10, v13')
    k('v_lshlrev_b32 v15, 3, v3')
    k('v_add_u32 v15, s39, v15')
    k('v_add_u32 v14, v14, v15')
    k('v_lshrrev_b32 v16, 1, v1')
    k('v_lshlrev_b32 v16, 12, v16')
    k('v_and_b32 v17, 1, v1')
    k('v_lshlrev_b32 v17, 4, v17')
    k('v_add_u32 v16, v16, v17')
    k('s_lshl_b32 s6, s37, 18')
    k('s_lshl_b32 s7, s47, 1')
    k('s_add_u32 s6, s6, s7')
    k('v_add_u32 v16, s6, v16')
    k('v_add_u32 v17, 0x20000, v16')
    k('s_lshl_b32 s48, s5, 11')
    k('s_add_u32 s48, s48, 65536')
    k('s_mov_b32 m0, s48')
    k('v_lshlrev_b32 v18, 2, v13')
    k(f'buffer_load_dwordx4 v16, s[{SY}:{SY+3}], 0 offen lds')
    k('s_add_u32 m0, s48, 1024')
    k('s_nop 0')
    k(f'buffer_load_dwordx4 v17, s[{SY}:{SY+3}], 0 offen lds')
    for T in range(4):
        k(f'buffer_load_dwordx2 v[{40+2*T}:{41+2*T}], v14, s[{SQ}:{SQ+3}], 0 offen offset:{T*32}')
    for T in range(4):
        k(f'buffer_load_dwordx2 v[{48+2*T}:{49+2*T}], v15, s[{SB2}:{SB2+3}], 0 offen offset:{T*32}')
    k(f'buffer_load_dword v56, v18, s[{SG}:{SG+3}], 0 offen')
    for i in range(4):
        for x in issue(i): k(x)
        for tau in range(4): k(bload(i, tau))
        k('v_add_u32 v5, 4096, v5')
    k('v_lshrrev_b32 v20, 2, v2')
    k('v_lshlrev_b32 v21, 2, v3')
    k('v_add_u32 v21, v21, v20')
    k('v_lshlrev_b32 v21, 7, v21')
    k('v_lshlrev_b32 v22, 1, v3')
    k('v_lshrrev_b32 v23, 3, v2')
    k('v_add_u32 v22, v22, v23')
    k('v_and_b32 v22, 3, v22')
    k('v_lshlrev_b32 v22, 5, v22')
    k('v_bfe_u32 v23, v2, 1, 1')
    k('v_lshlrev_b32 v23, 4, v23')
    k('v_add_u32 v21, v21, v23')
    k('v_and_b32 v23, 1, v2')
    k('v_lshlrev_b32 v23, 3, v23')
    k('v_add_u32 v21, v21, v23')
    k('v_add_u32 v21, s45, v21')
    for T in range(4):
        k(f'v_xor_b32 v23, {T*32}, v22')
        k(f'v_add_u32 v{24+T}, v21, v23')
    k('v_add_u32 v28, s45, v4')
    for tau in range(1, 4):
        k(f's_sub_u32 s6, s5, {tau}')
        k('s_and_b32 s6, s6, 3')
        k('s_lshl_b32 s6, s6, 14')
        k(f'v_add_u32 v{28+tau}, s6, v4')
    k('v_lshlrev_b32 v32, 3, v1')
    k('v_add_u32 v32, s48, v32')
    ACC = 64
    AP, AQ = 192, 208
    def areads(i, A):
        slot = i % 4
        r = []
        for T in range(4):
            for h in range(2):
                r.append(f'ds_read_b64_tr_b16 v[{A+4*T+2*h}:{A+4*T+2*h+1}], v{24+T} offset:{slot*4096+h*2048}')
        return r
    N = 14
    k('s_waitcnt vmcnt(28)')
    for r in areads(0, AP): k(r)
    for i in range(N):
        A = AP if i % 2 == 0 else AQ
        nA = AQ if i % 2 == 0 else AP
        last = min(i+3, N-1)
        if i+1 < N:
            n = 4 + 8*(last-(i+1))
        else:
            n = 0
        k(f's_waitcnt vmcnt({n}) lgkmcnt(0)')
        rd = areads(i+1, nA) if i+1 < N else []
        dma = []
        if i+4 < N:
            slot = i % 4
            k(f's_add_u32 m0, s45, {slot*4096}')
            k(f's_add_u32 s46, s44, {(i+4)*32768}')
            dma = [f'buffer_load_dwordx4 v{6+jj}, s[{SW2}:{SW2+3}], s46 offen offset:{jj*1024} lds' for jj in range(4)]
        slot = i % 4
        for tau in range(4):
            for T in range(4):
                d = ACC + (tau*4+T)*4
                b = BR + slot*16 + tau*4
                c = '0' if i == 0 else f'v[{d}:{d+3}]'
                k(f'v_mfma_f32_16x16x32_bf16 v[{d}:{d+3}], v[{A+4*T}:{A+4*T+3}], v[{b}:{b+3}], {c}')
                if rd: k(rd.pop(0))
                elif dma: k(dma.pop(0))
        assert not dma and not rd
        if i+4 < N:
            for tau in range(4): k(bload(i+4, tau))
            k('v_add_u32 v5, 4096, v5')
    k.nop(8)
    for tau in range(1, 4):
        for T in range(4):
            d = ACC + (tau*4+T)*4
            k(f'ds_write_b128 v28, v[{d}:{d+3}] offset:{tau*4096+T*1024}')
    for T in range(4):
        k(f'ds_read_b64_tr_b16 v[{128+2*T}:{129+2*T}], v32 offset:{T*512}')
    k('s_waitcnt lgkmcnt(0)')
    k('s_barrier')
    for tau in range(1, 4):
        for T in range(4):
            p = 144 + ((tau-1)*4+T)*4
            k(f'ds_read_b128 v[{p}:{p+3}], v{28+tau} offset:{tau*4096+T*1024}')
    k('v_sub_f32 v57, 1.0, v56')
    for T in range(4):
        k(f'v_lshlrev_b32 v96, 16, v{40+2*T}')
        k(f'v_and_b32 v97, 0xffff0000, v{40+2*T}')
        k(f'v_lshlrev_b32 v98, 16, v{41+2*T}')
        k(f'v_and_b32 v99, 0xffff0000, v{41+2*T}')
        k(f'v_lshlrev_b32 v100, 16, v{128+2*T}')
        k(f'v_and_b32 v101, 0xffff0000, v{128+2*T}')
        k(f'v_lshlrev_b32 v102, 16, v{129+2*T}')
        k(f'v_and_b32 v103, 0xffff0000, v{129+2*T}')
        k(f'v_pk_mul_f32 v[96:97], v[96:97], v[100:101]')
        k(f'v_pk_mul_f32 v[98:99], v[98:99], v[102:103]')
        a = 108 + 4*T
        for r in range(4):
            k(f'v_mul_f32 v{a+r}, v56, v{96+r}')
        k(f'v_lshlrev_b32 v104, 16, v{48+2*T}')
        k(f'v_and_b32 v105, 0xffff0000, v{48+2*T}')
        k(f'v_lshlrev_b32 v106, 16, v{49+2*T}')
        k(f'v_and_b32 v107, 0xffff0000, v{49+2*T}')
        d = ACC + T*4
        k(f'v_pk_add_f32 v[{d}:{d+1}], v[{d}:{d+1}], v[104:105]')
        k(f'v_pk_add_f32 v[{d+2}:{d+3}], v[{d+2}:{d+3}], v[106:107]')
    k('s_waitcnt lgkmcnt(0)')
    for T in range(4):
        d = ACC + T*4
        for tau in range(1, 4):
            p = 144 + ((tau-1)*4+T)*4
            k(f'v_pk_add_f32 v[{d}:{d+1}], v[{d}:{d+1}], v[{p}:{p+1}]')
            k(f'v_pk_add_f32 v[{d+2}:{d+3}], v[{d+2}:{d+3}], v[{p+2}:{p+3}]')
        a = 108 + 4*T
        for r in range(4):
            k(f'v_fma_f32 v{d+r}, v57, v{d+r}, v{a+r}')
        k(f'v_cvt_pk_bf16_f32 v{132+2*T}, v{d}, v{d+1}')
        k(f'v_cvt_pk_bf16_f32 v{133+2*T}, v{d+2}, v{d+3}')
        k(f'buffer_store_dwordx2 v[{132+2*T}:{133+2*T}], v14, s[{SO}:{SO+3}], 0 offen offset:{T*32} {store_mod}')
    k.label(f'L_{name}_end')
    k('s_endpgm')
    return k, 224, K3_LDS, 256

if __name__ == '__main__':
    k, v, lds, blk = gen_k3()
    for p in check(k.lines, k.name): print(p)
```

```python
import sys
from asmlib import *
import importlib

HEADER = open('gated_mix__ssm_conv_h3__dense_activation_squared_relu__prompt.s.ref').read().split('; Override launch')[0]

def build(parts, path):
    out = [HEADER.rstrip('\n')]
    for k, v, lds, blk, grid in parts:
        out.append(f'; @launch kernel={k.name} grid=({grid},1,1) block=({blk},1,1) lds={lds}')
    out.append('.amdgcn_target "amdgcn-amd-amdhsa--gfx950"')
    out.append('.text')
    nprob = 0
    for k, v, lds, blk, grid in parts:
        for p in check(k.lines, k.name):
            print('HAZARD', p); nprob += 1
        out.append(kernel_text(k))
    out.append('.section .rodata,"a"')
    for k, v, lds, blk, grid in parts:
        out.append(descriptor(k.name, v))
    open(path, 'w').write('\n'.join(out) + '\n')
    return nprob

if __name__ == '__main__':
    which = sys.argv[1] if len(sys.argv) > 1 else 'all'
    path = sys.argv[2] if len(sys.argv) > 2 else 'cur.s'
    parts = []
    import k1
    kk, v, lds, blk = k1.gen_k1()
    parts.append((kk, v, lds, blk, 256))
    if which in ('all', 'k12'):
        import k2
        kk, v, lds, blk = k2.gen_k2()
        parts.append((kk, v, lds, blk, 256))
    if which == 'all':
        import k3
        kk, v, lds, blk = k3.gen_k3()
        parts.append((kk, v, lds, blk, 256))
    n = build(parts, path)
    print('wrote', path, 'hazards', n)
```

```python
import re

REG_RE = re.compile(r'\b([vsa])\[(\d+):(\d+)\]|\b([vsa])(\d+)\b|\b(vcc|exec|m0|scc)\b')

def regs_of(tok):
    out = set()
    for m in REG_RE.finditer(tok):
        if m.group(1):
            for i in range(int(m.group(2)), int(m.group(3)) + 1):
                out.add((m.group(1), i))
        elif m.group(4):
            out.add((m.group(4), int(m.group(5))))
        else:
            out.add(('x', m.group(6)))
    return out

TRANS = ('v_exp_f32', 'v_log_f32', 'v_rcp_f32', 'v_rsq_f32', 'v_sqrt_f32', 'v_sin_f32', 'v_cos_f32')

class Ins:
    def __init__(self, text):
        self.text = text
        t = text.split(';')[0].strip()
        self.is_label = t.endswith(':')
        self.op = t.split()[0] if t else ''
        rest = t[len(self.op):].strip()
        self.ops = [x.strip() for x in rest.split(',')] if rest else []
        op = self.op
        self.kind = 'other'
        self.defs = set(); self.uses = set()
        self.srcC = set(); self.srcAB = set()
        self.store_data = set()
        if self.is_label or not t or t.startswith('.'):
            self.kind = 'none'; return
        if op.startswith('v_mfma'):
            self.kind = 'mfma'
            self.defs = regs_of(self.ops[0])
            self.srcAB = regs_of(self.ops[1]) | regs_of(self.ops[2])
            self.srcC = regs_of(self.ops[3])
            self.uses = self.srcAB | self.srcC
            self.passes = 8 if '32x32' in op else 4
        elif op.startswith('v_'):
            self.kind = 'valu'
            nd = 1
            if op.startswith('v_cmp'):
                self.defs = regs_of(self.ops[0])
                for o in self.ops[1:]: self.uses |= regs_of(o)
            elif op.startswith('v_readfirstlane') or op.startswith('v_readlane'):
                self.defs = regs_of(self.ops[0])
                for o in self.ops[1:]: self.uses |= regs_of(o)
            elif op.startswith('v_add_co') or op.startswith('v_sub_co') or op.startswith('v_addc_co'):
                self.defs = regs_of(self.ops[0]) | regs_of(self.ops[1])
                for o in self.ops[2:]: self.uses |= regs_of(o)
            elif op.startswith('v_permlane') or op.startswith('v_swap'):
                self.defs = regs_of(self.ops[0]) | regs_of(self.ops[1])
                self.uses = set(self.defs)
            else:
                self.defs = regs_of(self.ops[0])
                for o in self.ops[1:]: self.uses |= regs_of(o)
                if op.startswith('v_fmac') or op.startswith('v_dot2c') or op.startswith('v_mac') or op.startswith('v_pk_fmac'):
                    self.uses |= regs_of(self.ops[0])
                if op.startswith('v_cndmask') and len(self.ops) == 3:
                    self.uses.add(('x', 'vcc'))
        elif op.startswith('buffer_') or op.startswith('global_'):
            self.kind = 'vmem'
            lds = bool(re.search(r'\blds\b', t))
            self.lds_dma = lds
            if 'store' in op:
                if op.startswith('buffer_'):
                    self.store_data = regs_of(self.ops[0])
                else:
                    self.store_data = regs_of(self.ops[1])
                for o in self.ops: self.uses |= regs_of(o)
                self.wide = ('x4' in op or 'x3' in op)
            elif 'atomic' in op:
                for o in self.ops: self.uses |= regs_of(o)
                if re.search(r'\bsc0\b', t): self.defs = regs_of(self.ops[0])
            elif lds:
                for o in self.ops: self.uses |= regs_of(o)
                self.uses.add(('x', 'm0'))
            else:
                self.defs = regs_of(self.ops[0])
                for o in self.ops[1:]: self.uses |= regs_of(o)
        elif op.startswith('ds_'):
            self.kind = 'ds'
            if 'write' in op or 'add' in op and 'rtn' not in op:
                for o in self.ops: self.uses |= regs_of(o)
            else:
                self.defs = regs_of(self.ops[0])
                for o in self.ops[1:]: self.uses |= regs_of(o)
        elif op.startswith('s_'):
            self.kind = 'salu'
            if op in ('s_waitcnt', 's_barrier', 's_endpgm', 's_nop', 's_branch', 's_setprio', 's_sleep') or op.startswith('s_cbranch'):
                pass
            elif op.startswith('s_cmp') or op.startswith('s_bitcmp'):
                for o in self.ops: self.uses |= regs_of(o)
                self.defs = {('x', 'scc')}
            else:
                self.defs = regs_of(self.ops[0])
                for o in self.ops[1:]: self.uses |= regs_of(o)
                if 'saveexec' in op:
                    self.defs.add(('x', 'exec'))
    def states(self):
        if self.kind == 'none': return 0
        if self.op == 's_nop':
            return int(self.ops[0], 0) + 1
        return 1

def check(lines, name=''):
    ins = [Ins(l) for l in lines]
    probs = []
    n = len(ins)
    for i, a in enumerate(ins):
        if a.kind == 'none': continue
        dist = 0
        for j in range(i + 1, n):
            b = ins[j]
            if b.kind == 'none':
                continue
            if dist >= 24: break
            need = 0; why = ''
            def req(k, w):
                nonlocal need, why
                if k > need: need, why = k, w
            vdefs = {r for r in a.defs if r[0] in 'va'}
            sdefs = {r for r in a.defs if r[0] == 's' or r == ('x', 'vcc')}
            if a.kind == 'valu':
                if b.kind == 'mfma' and vdefs & b.uses: req(2, 'VALU->MFMA')
                if b.kind == 'valu' and (b.op.startswith('v_readfirstlane') or b.op.startswith('v_readlane')) and vdefs & b.uses: req(1, 'VALU->readlane')
                if b.kind == 'vmem' and sdefs & b.uses: req(5, 'VALU sgpr->VMEM')
                if b.kind == 'valu' and sdefs & b.uses: req(2, 'VALU sgpr->VALU')
                if a.op in TRANS and b.kind == 'valu' and vdefs & b.uses: req(1, 'trans')
                if a.op.startswith('v_dot') and b.kind in ('valu', 'mfma', 'vmem', 'ds'):
                    if b.op == a.op:
                        ab = set()
                        for o in b.ops[1:3]: ab |= regs_of(o)
                        if vdefs & ab: req(3, 'dot->dot AB')
                    elif vdefs & (b.uses | b.defs): req(3, 'dot->other')
                if b.kind == 'valu' and ('dpp' in b.text or 'row_' in b.text or 'quad_perm' in b.text or b.op.startswith('v_permlane')) and vdefs & b.uses: req(2, 'VALU->DPP')
                if ('x', 'exec') in a.defs and b.kind == 'mfma': req(4, 'VALU exec->MFMA')
            if a.kind == 'mfma':
                lat = 8 if a.passes == 4 else 12
                if b.kind == 'mfma':
                    if vdefs & b.srcAB: req(lat, 'MFMA D->MFMA AB')
                    if vdefs & b.srcC and not (b.srcC == a.defs and b.passes == a.passes): req(6 if a.passes == 4 else 10, 'MFMA D->MFMA C partial')
                elif b.kind in ('valu',) and vdefs & (b.uses | b.defs): req(lat, 'MFMA D->VALU')
                elif b.kind in ('vmem', 'ds') and vdefs & (b.uses | b.defs): req(lat, 'MFMA D->mem')
                if b.kind == 'valu' and a.srcC & b.defs: req(3 if a.passes == 4 else 7, 'MFMA C WAR')
            if a.kind == 'vmem' and a.store_data and getattr(a, 'wide', False):
                if b.kind == 'valu' and a.store_data & b.defs: req(2, 'store data WAR valu')
                elif a.store_data & b.defs: req(1, 'store data WAR')
            if a.kind == 'salu' and ('x', 'm0') in a.defs and b.kind == 'vmem' and getattr(b, 'lds_dma', False): req(1, 'm0->dma')
            if need > dist:
                probs.append(f'{name}: line {i}: "{a.text.strip()}" -> line {j}: "{b.text.strip()}" needs {need} has {dist} ({why})')
            dist += b.states()
            if b.op in ('s_branch', 's_endpgm'): break
    return probs

class K:
    def __init__(self, name):
        self.name = name
        self.lines = []
    def __call__(self, s):
        for l in s.split('\n'):
            if l.strip():
                self.lines.append('    ' + l.strip() if not l.strip().endswith(':') else l.strip())
    def c(self, s):
        self.lines.append('    ; ' + s)
    def label(self, s):
        self.lines.append(s + ':')
    def nop(self, n):
        while n > 0:
            k = min(n, 16)
            self.lines.append(f'    s_nop {k-1}')
            n -= k
    stamp = None
    def stamp_start(self):
        if self.stamp is None: return
        self('s_memrealtime s[88:89]')
        self('s_memtime s[86:87]')
        self('s_load_dwordx2 s[96:97], s[0:1], 112')
        self('s_mov_b32 s98, 0x1000000\ns_mov_b32 s99, 0x00020000')
        self('v_lshrrev_b32 v255, 6, v0')
    def mark(self, idx):
        if self.stamp is None: return
        self(f's_memrealtime s[{70+2*idx}:{71+2*idx}]')
    def end(self):
        if self.stamp is not None:
            self('s_memrealtime s[90:91]')
            self('s_memtime s[100:101]')
            self('s_waitcnt lgkmcnt(0)')
            self('s_sub_u32 s86, s100, s86')
            self('s_waitcnt vmcnt(0) lgkmcnt(0)')
            self('s_memrealtime s[92:93]')
            self('s_waitcnt lgkmcnt(0)')
            self('s_mov_b64 exec, 1')
            self('v_readfirstlane_b32 s94, v255')
            self(f's_lshl_b32 s95, s2, 9')
            self('s_lshl_b32 s94, s94, 6')
            self('s_add_u32 s94, s94, s95')
            self(f's_add_u32 s94, s94, {0xD00000 + self.stamp*0x20000}')
            self('v_mov_b32 v250, s94')
            self('v_mov_b32 v0, s88\nv_mov_b32 v1, s90\nv_mov_b32 v2, s92\nv_mov_b32 v3, s86')
            self('buffer_store_dwordx4 v[0:3], v250, s[96:99], 0 offen')
            self('v_mov_b32 v4, s70\nv_mov_b32 v5, s72\nv_mov_b32 v6, s74\nv_mov_b32 v7, s76')
            self('buffer_store_dwordx4 v[4:7], v250, s[96:99], 0 offen offset:16')
            self('v_mov_b32 v8, s78\nv_mov_b32 v9, s80\nv_mov_b32 v10, s82\nv_mov_b32 v11, s84')
            self('buffer_store_dwordx4 v[8:11], v250, s[96:99], 0 offen offset:32')
        self('s_endpgm')
    def text(self):
        return '\n'.join(self.lines)

def kernel_text(k):
    return (f'.globl {k.name}\n.p2align 8\n.type {k.name},@function\n{k.name}:\n' + k.text() + '\n')

def descriptor(name, vgpr=256, sgpr=102, accum=None):
    accum = accum or ((vgpr + 3) // 4 * 4)
    return f'''.p2align 6
.amdhsa_kernel {name}
  .amdhsa_next_free_vgpr {vgpr}
  .amdhsa_next_free_sgpr {sgpr}
  .amdhsa_accum_offset {accum}
  .amdhsa_group_segment_fixed_size 0
  .amdhsa_kernarg_size 120
  .amdhsa_user_sgpr_count 2
  .amdhsa_user_sgpr_kernarg_segment_ptr 1
  .amdhsa_system_sgpr_workgroup_id_x 1
.end_amdhsa_kernel
'''
```

```python
import sys
from asmlib import *
import importlib

HEADER = open('gated_mix__ssm_conv_h3__dense_activation_squared_relu__prompt.s.ref').read().split('; Override launch')[0]

def build(parts, path):
    out = [HEADER.rstrip('\n')]
    for k, v, lds, blk, grid in parts:
        out.append(f'; @launch kernel={k.name} grid=({grid},1,1) block=({blk},1,1) lds={lds}')
    out.append('.amdgcn_target "amdgcn-amd-amdhsa--gfx950"')
    out.append('.text')
    nprob = 0
    for k, v, lds, blk, grid in parts:
        for p in check(k.lines, k.name):
            print('HAZARD', p); nprob += 1
        out.append(kernel_text(k))
    out.append('.section .rodata,"a"')
    for k, v, lds, blk, grid in parts:
        out.append(descriptor(k.name, v))
    open(path, 'w').write('\n'.join(out) + '\n')
    return nprob

if __name__ == '__main__':
    which = sys.argv[1] if len(sys.argv) > 1 else 'all'
    path = sys.argv[2] if len(sys.argv) > 2 else 'cur.s'
    parts = []
    st = len(sys.argv) > 3 and sys.argv[3] == 'stamp'
    import k1
    kk, v, lds, blk = k1.gen_k1(stamp=0 if st else None)
    parts.append((kk, v, lds, blk, 256))
    if which in ('all', 'k12'):
        import k2
        kk, v, lds, blk = k2.gen_k2(stamp=1 if st else None)
        parts.append((kk, v, lds, blk, 256))
    if which == 'all':
        import k3
        kk, v, lds, blk = k3.gen_k3(stamp=2 if st else None)
        parts.append((kk, v, lds, blk, 256))
    n = build(parts, path)
    print('wrote', path, 'hazards', n)
```

```python
from asmlib import *

HF_OFF = 0
HF_BYTES = 32*56*4*1024
UT_OFF = 0x800000
YT_OFF = 0xA00000
G_OFF  = 0xC00000
K1_LDS = 131072 + 4*5120

def srd_consts(k, base, nbytes):
    k(f's_mov_b32 s{base+2}, {nbytes}')
    k(f's_mov_b32 s{base+3}, 0x00020000')

def gen_k1(name='k1_kernel', store_mod='', stamp=None):
    k = K(name)
    k.stamp = stamp
    SX, SW1, SK_, SV, SHF, SUT, SSK, SB1, SGW, SG = 8, 12, 16, 20, 24, 28, 32, 36, 40, 44
    k('s_cmp_ge_u32 s2, 256')
    k(f's_cbranch_scc1 L_{name}_end')
    k.stamp_start()
    k(f's_load_dwordx2 s[{SX}:{SX+1}], s[0:1], 0')
    k(f's_load_dwordx2 s[{SW1}:{SW1+1}], s[0:1], 56')
    k(f's_load_dwordx2 s[{SK_}:{SK_+1}], s[0:1], 8')
    k(f's_load_dwordx2 s[{SV}:{SV+1}], s[0:1], 16')
    k(f's_load_dwordx2 s[{SHF}:{SHF+1}], s[0:1], 112')
    k(f's_load_dwordx2 s[{SSK}:{SSK+1}], s[0:1], 24')
    k(f's_load_dwordx2 s[{SB1}:{SB1+1}], s[0:1], 64')
    k(f's_load_dwordx2 s[{SGW}:{SGW+1}], s[0:1], 88')
    k('v_lshrrev_b32 v1, 6, v0')
    k('s_and_b32 s3, s2, 7')
    k('s_lshr_b32 s4, s2, 3')
    k('v_readfirstlane_b32 s5, v1')
    k('v_and_b32 v1, 63, v0')
    k('v_and_b32 v2, 15, v0')
    k('v_bfe_u32 v3, v0, 4, 2')
    srd_consts(k, SX, 2097152)
    srd_consts(k, SW1, 512*3584)
    srd_consts(k, SK_, 2097152)
    srd_consts(k, SV, 2097152)
    srd_consts(k, SHF, HF_BYTES)
    srd_consts(k, SUT, 512*4096)
    srd_consts(k, SSK, 4096)
    srd_consts(k, SB1, 3584)
    srd_consts(k, SGW, 1024)
    srd_consts(k, SG, 8192)
    k('s_and_b32 s6, s3, 3')
    k('s_lshl_b32 s6, s6, 2')
    k('s_and_b32 s7, s4, 3')
    k('s_add_u32 s48, s6, s7')
    k('s_lshr_b32 s6, s3, 2')
    k('s_mul_i32 s6, s6, 7')
    k('s_lshr_b32 s7, s4, 2')
    k('s_add_u32 s49, s6, s7')
    k('s_waitcnt lgkmcnt(0)')
    k(f's_add_u32 s{SUT}, s{SHF}, {UT_OFF}')
    k(f's_addc_u32 s{SUT+1}, s{SHF+1}, 0')
    k(f's_add_u32 s{SG}, s{SHF}, {G_OFF}')
    k(f's_addc_u32 s{SG+1}, s{SHF+1}, 0')
    k('s_cmp_ge_u32 s5, 4')
    k(f's_cbranch_scc1 L_{name}_hi')

    k.c('kv phase')
    k('s_mul_i32 s50, s5, 5120')
    k('s_add_u32 s50, s50, 131072')
    k('s_lshl_b32 s6, s4, 6')
    k('s_lshl_b32 s7, s5, 4')
    k('s_add_u32 s51, s6, s7')
    k('s_sub_u32 s6, s51, 8')
    k('s_lshl_b32 s6, s6, 10')
    k('s_lshl_b32 s7, s3, 7')
    k('s_add_u32 s6, s6, s7')
    k('v_lshrrev_b32 v4, 3, v1')
    k('v_lshlrev_b32 v4, 10, v4')
    k('v_and_b32 v5, 7, v1')
    k('v_and_b32 v6, 1, v3')
    k('v_lshlrev_b32 v6, 2, v6')
    k('v_xor_b32 v5, v5, v6')
    k('v_lshlrev_b32 v5, 4, v5')
    k('v_add_u32 v4, v4, v5')
    k('v_add_u32 v4, s6, v4')
    k('s_mov_b32 m0, s50')
    k('v_add_u32 v5, 8192, v4')
    k(f'buffer_load_dwordx4 v4, s[{SK_}:{SK_+3}], 0 offen lds')
    k('s_add_u32 m0, s50, 1024')
    k('v_add_u32 v6, 16384, v4')
    k(f'buffer_load_dwordx4 v5, s[{SK_}:{SK_+3}], 0 offen lds')
    k('s_add_u32 m0, s50, 2048')
    k('s_nop 0')
    k(f'buffer_load_dwordx4 v6, s[{SK_}:{SK_+3}], 0 offen lds')
    k('s_add_u32 m0, s50, 3072')
    k('s_nop 0')
    k(f'buffer_load_dwordx4 v5, s[{SV}:{SV+3}], 0 offen lds')
    k('s_add_u32 m0, s50, 4096')
    k('s_nop 0')
    k(f'buffer_load_dwordx4 v6, s[{SV}:{SV+3}], 0 offen lds')
    k('s_lshl_b32 s6, s3, 6')
    k('v_add_u32 v7, s6, v1')
    k('v_lshlrev_b32 v8, 3, v7')
    k(f'buffer_load_dwordx2 v[10:11], v8, s[{SSK}:{SSK+3}], 0 offen')
    k('s_and_b32 s52, s5, 1')
    k('s_lshr_b32 s53, s5, 1')
    k('s_lshl_b32 s6, s49, 8')
    k('s_lshl_b32 s7, s52, 7')
    k('s_add_u32 s6, s6, s7')
    k('v_lshlrev_b32 v9, 3, v3')
    k('v_add_u32 v9, s6, v9')
    for ft in range(4):
        k(f'buffer_load_dwordx2 v[{208+2*ft}:{209+2*ft}], v9, s[{SB1}:{SB1+3}], 0 offen offset:{ft*32}')
    k('v_lshrrev_b32 v12, 2, v2')
    k('v_lshlrev_b32 v12, 7, v12')
    k('v_lshlrev_b32 v13, 1, v3')
    k('v_bfe_u32 v14, v2, 1, 1')
    k('v_add_u32 v13, v13, v14')
    k('v_lshrrev_b32 v14, 3, v2')
    k('v_lshlrev_b32 v14, 2, v14')
    k('v_xor_b32 v13, v13, v14')
    k('v_lshlrev_b32 v13, 4, v13')
    k('v_add_u32 v12, v12, v13')
    k('v_and_b32 v13, 1, v2')
    k('v_lshlrev_b32 v13, 3, v13')
    k('v_add_u32 v12, v12, v13')
    k('s_add_u32 s6, s50, 512')
    k('v_add_u32 v12, s6, v12')
    k('s_sub_u32 s6, 2032, s51')
    k('s_lshl_b32 s6, s6, 1')
    k('v_lshlrev_b32 v15, 12, v7')
    k('v_add_u32 v15, s6, v15')
    k('v_lshrrev_b32 v20, 2, v2')
    k('v_lshlrev_b32 v21, 3, v3')
    k('v_add_u32 v21, v21, v20')
    k('v_lshlrev_b32 v21, 8, v21')
    k('v_and_b32 v22, 1, v3')
    k('v_lshlrev_b32 v22, 2, v22')
    k('v_add_u32 v22, v22, v20')
    k('s_lshl_b32 s6, s52, 2')
    k('v_xor_b32 v22, s6, v22')
    k('v_lshlrev_b32 v22, 5, v22')
    k('v_bfe_u32 v23, v2, 1, 1')
    k('v_lshlrev_b32 v23, 4, v23')
    k('v_and_b32 v24, 1, v2')
    k('v_lshlrev_b32 v24, 3, v24')
    k('v_add_u32 v21, v21, v23')
    k('v_add_u32 v21, v21, v24')
    for ft in range(4):
        k(f'v_xor_b32 v23, {ft*32}, v22')
        k(f'v_add_u32 v{216+ft}, v21, v23')
        k(f'v_add_u32 v{220+ft}, 0x10000, v{216+ft}')
    k('v_and_b32 v20, 7, v2')
    k('v_xor_b32 v20, v20, v3')
    k('v_lshlrev_b32 v20, 4, v20')
    k('v_lshlrev_b32 v21, 7, v2')
    k('v_add_u32 v20, v20, v21')
    k('s_lshl_b32 s6, s53, 13')
    k('v_add_u32 v224, s6, v20')
    k('v_xor_b32 v225, 64, v224')
    k('v_add_u32 v226, 0x10000, v224')
    k('v_add_u32 v227, 0x10000, v225')
    k('s_waitcnt vmcnt(0)')
    k.mark(0)
    for b in range(5):
        k(f'ds_read_b64_tr_b16 v[{64+2*b}:{65+2*b}], v12 offset:{b*512}')
    for b in range(4):
        k(f'ds_read_b64_tr_b16 v[{80+2*b}:{81+2*b}], v12 offset:{2560+b*512}')
    k('v_alignbit_b32 v16, v10, v10, 16')
    k('v_alignbit_b32 v17, v11, v11, 16')
    for ft in range(4):
        k(f'v_lshlrev_b32 v{192+4*ft}, 16, v{208+2*ft}')
        k(f'v_and_b32 v{193+4*ft}, 0xffff0000, v{208+2*ft}')
        k(f'v_lshlrev_b32 v{194+4*ft}, 16, v{209+2*ft}')
        k(f'v_and_b32 v{195+4*ft}, 0xffff0000, v{209+2*ft}')
    k('s_waitcnt lgkmcnt(4)')
    for a in range(1, 10):
        k(f'v_alignbit_b32 v{90+a}, v{64+a}, v{63+a}, 16')
    for sg in range(16):
        t = sg + 4
        a = t // 2
        if t & 1:
            k(f'v_dot2_f32_bf16 v{100+sg}, v{64+a}, v16, 0')
        else:
            k(f'v_dot2_f32_bf16 v{100+sg}, v{90+a}, v16, 0')
    for sg in range(16):
        t = sg + 4
        a = t // 2
        if t & 1:
            k(f'v_dot2_f32_bf16 v{100+sg}, v{64+a-1}, v17, v{100+sg}')
        else:
            k(f'v_dot2_f32_bf16 v{100+sg}, v{90+a-1}, v17, v{100+sg}')
    k('s_waitcnt lgkmcnt(0)')
    for p in range(8):
        k(f'v_lshlrev_b32 v{120+2*p}, 16, v{80+p}')
        k(f'v_and_b32 v{121+2*p}, 0xffff0000, v{80+p}')
    for sg in range(16):
        k(f'v_mul_f32 v{100+sg}, v{100+sg}, v{120+sg}')
    for p in range(8):
        k(f'v_cvt_pk_bf16_f32 v{140+p}, v{100+15-2*p}, v{100+14-2*p}')
    k(f'buffer_store_dwordx4 v[140:143], v15, s[{SUT}:{SUT+3}], 0 offen {store_mod}')
    k(f'buffer_store_dwordx4 v[144:147], v15, s[{SUT}:{SUT+3}], 0 offen offset:16 {store_mod}')
    k.mark(1)
    k('s_cmp_ge_u32 s4, 28')
    k(f's_cbranch_scc1 L_{name}_fin')

    k.c('GEMM1 compute waves')
    ACC = 64
    PA, PB, QA, QB = 128, 144, 160, 176
    def reads(s, ks, A, B):
        slot = s % 4
        half = slot >> 1
        off = (slot & 1) * 32768
        r = []
        vb = 224 + 2*half + ks
        def rb(tt): return f'ds_read_b128 v[{B+4*tt}:{B+4*tt+3}], v{vb} offset:{off+tt*2048}'
        def ra(ft, h): return f'ds_read_b64_tr_b16 v[{A+4*ft+2*h}:{A+4*ft+2*h+1}], v{216+4*half+ft} offset:{off+16384+ks*8192+h*1024}'
        r = [rb(0), ra(0,0), ra(0,1), rb(1), rb(2), rb(3), ra(1,0), ra(1,1), ra(2,0), ra(2,1), ra(3,0), ra(3,1)]
        return r
    k('s_lshl_b32 s6, s48, 1')
    k('s_add_u32 s6, s6, s53')
    k('s_mul_i32 s6, s6, 56')
    k('s_lshl_b32 s7, s49, 2')
    k('s_add_u32 s6, s6, s7')
    k('s_lshl_b32 s7, s52, 1')
    k('s_add_u32 s6, s6, s7')
    k('s_lshl_b32 s6, s6, 12')
    k('v_lshlrev_b32 v228, 4, v1')
    k('v_add_u32 v228, s6, v228')
    k('v_add_u32 v229, 4096, v228')
    k('s_barrier')
    k.mark(2)
    for r in reads(0, 0, PA, PB): k(r)
    k('s_waitcnt lgkmcnt(0)')
    for s in range(8):
        for ks in range(2):
            A, B = (PA, PB) if ks == 0 else (QA, QB)
            nA, nB = (QA, QB) if ks == 0 else (PA, PB)
            if ks == 0: rd = reads(s, 1, nA, nB)
            elif s < 7: rd = reads(s+1, 0, nA, nB)
            else: rd = []
            rd = list(rd)
            idx = 0
            for ft in range(4):
                for tt in range(4):
                    d = ACC + (ft*4+tt)*4
                    c = f'v[{192+4*ft}:{195+4*ft}]' if (s == 0 and ks == 0) else f'v[{d}:{d+3}]'
                    k(f'v_mfma_f32_16x16x32_bf16 v[{d}:{d+3}], v[{A+4*ft}:{A+4*ft+3}], v[{B+4*tt}:{B+4*tt+3}], {c}')
                    for _ in range(2):
                        if rd: k(rd.pop(0))
                    idx += 1
            if not (s == 7 and ks == 1):
                k('s_waitcnt lgkmcnt(0)')
            if ks == 0 and s < 7:
                k('s_barrier')
                if s == 0: k.mark(3)
                if s == 3: k.mark(4)
    k.mark(5)
    k.nop(8)
    T = 128
    for kp in range(2):
        for tt in range(4):
            d0 = ACC + ((2*kp)*4+tt)*4
            d1 = ACC + ((2*kp+1)*4+tt)*4
            for d in (d0, d1):
                for r in range(4):
                    k(f'v_max_f32 v{d+r}, 0, v{d+r}')
            for d in (d0, d1):
                k(f'v_pk_mul_f32 v[{d}:{d+1}], v[{d}:{d+1}], v[{d}:{d+1}]')
                k(f'v_pk_mul_f32 v[{d+2}:{d+3}], v[{d+2}:{d+3}], v[{d+2}:{d+3}]')
            t = T + (kp*4+tt)*4
            k(f'v_cvt_pk_bf16_f32 v{t}, v{d0}, v{d0+1}')
            k(f'v_cvt_pk_bf16_f32 v{t+1}, v{d0+2}, v{d0+3}')
            k(f'v_cvt_pk_bf16_f32 v{t+2}, v{d1}, v{d1+1}')
            k(f'v_cvt_pk_bf16_f32 v{t+3}, v{d1+2}, v{d1+3}')
            k(f'buffer_store_dwordx4 v[{t}:{t+3}], v{228+kp}, s[{SHF}:{SHF+3}], 0 offen offset:{tt*1024} {store_mod}')
    k.end()

    k.label(f'L_{name}_hi')
    k('s_sub_u32 s5, s5, 4')
    k('s_cmp_ge_u32 s4, 28')
    k(f's_cbranch_scc1 L_{name}_gate')
    k.c('loader')
    k('s_lshl_b32 s6, s48, 7')
    k('s_lshl_b32 s7, s5, 5')
    k('s_add_u32 s6, s6, s7')
    k('s_lshl_b32 s6, s6, 10')
    k('v_lshrrev_b32 v8, 3, v1')
    k('v_and_b32 v9, 7, v1')
    k('v_xor_b32 v9, v9, v8')
    k('v_lshlrev_b32 v9, 4, v9')
    k('v_lshlrev_b32 v8, 10, v8')
    k('v_add_u32 v8, v8, v9')
    k('v_add_u32 v4, s6, v8')
    for jj in range(1, 4):
        k(f'v_add_u32 v{4+jj}, {jj*7168}, v4')
    k('s_lshl_b32 s6, s5, 4')
    k('s_mul_i32 s6, s6, 3584')
    k('s_lshl_b32 s7, s49, 8')
    k('s_add_u32 s6, s6, s7')
    k('v_lshlrev_b32 v12, 1, v3')
    k('v_xor_b32 v12, v12, v2')
    k('v_lshlrev_b32 v12, 4, v12')
    k('v_mul_u32_u24 v13, 3584, v3')
    k('v_add_u32 v12, v12, v13')
    k('v_add_u32 v8, s6, v12')
    k(f'v_add_u32 v9, {4*3584-1024}, v8')
    k('v_xor_b32 v12, 128, v8')
    k(f'v_add_u32 v10, {8*3584-2048}, v12')
    k(f'v_add_u32 v11, {12*3584-3072}, v12')
    k('s_lshl_b32 s50, s5, 12')
    def stage(s):
        slot = s % 4
        k(f's_add_u32 m0, s50, {slot*32768}')
        k(f's_mov_b32 s51, {s*128}')
        for jj in range(4):
            k(f'buffer_load_dwordx4 v{4+jj}, s[{SX}:{SX+3}], s51 offen offset:{jj*1024} lds')
        k(f's_add_u32 m0, s50, {slot*32768+16384}')
        k(f's_mov_b32 s51, {s*229376}')
        for jj in range(4):
            k(f'buffer_load_dwordx4 v{8+jj}, s[{SW1}:{SW1+3}], s51 offen offset:{jj*1024} lds')
    for s in range(4): stage(s)
    k.mark(0)
    k('s_waitcnt vmcnt(24)')
    k.mark(1)
    k('s_barrier')
    for s in range(7):
        n = 16 if s <= 4 else (8 if s == 5 else 0)
        k(f's_waitcnt vmcnt({n})')
        k('s_barrier')
        if s + 4 < 8: stage(s+4)
    k.end()

    k.label(f'L_{name}_gate')
    k('s_lshl_b32 s6, s3, 2')
    k('s_add_u32 s6, s6, s4')
    k('s_sub_u32 s6, s6, 28')
    k('s_lshl_b32 s6, s6, 6')
    k('s_lshl_b32 s7, s5, 4')
    k('s_add_u32 s6, s6, s7')
    k('v_add_u32 v4, s6, v2')
    k('v_lshlrev_b32 v5, 10, v4')
    k('v_lshlrev_b32 v6, 4, v3')
    k('v_add_u32 v5, v5, v6')
    for s in range(16):
        k(f'buffer_load_dwordx4 v[{64+4*s}:{67+4*s}], v5, s[{SX}:{SX+3}], 0 offen offset:{s*64}')
    for s in range(16):
        k(f'buffer_load_dwordx4 v[{128+4*s}:{131+4*s}], v6, s[{SGW}:{SGW+3}], 0 offen offset:{s*64}')
    k('v_mov_b32 v8, 0\nv_mov_b32 v9, 0\nv_mov_b32 v10, 0\nv_mov_b32 v11, 0')
    k('v_lshlrev_b32 v7, 2, v4')
    k('s_waitcnt vmcnt(0)')
    for s in range(16):
        k(f'v_mfma_f32_16x16x32_bf16 v[8:11], v[{128+4*s}:{131+4*s}], v[{64+4*s}:{67+4*s}], v[8:11]')
    k.nop(8)
    k('v_mul_f32 v8, 0xbfb8aa3b, v8')
    k('v_exp_f32 v8, v8')
    k('s_nop 0')
    k('v_add_f32 v8, 1.0, v8')
    k('v_rcp_f32 v8, v8')
    k('v_cmp_gt_u32 vcc, 16, v1')
    k('s_and_saveexec_b64 s[52:53], vcc')
    k(f'buffer_store_dword v8, v7, s[{SG}:{SG+3}], 0 offen {store_mod}')
    k.label(f'L_{name}_fin')
    k.end()
    k.label(f'L_{name}_end')
    k('s_endpgm')
    return k, (256 if stamp is not None else 232), K1_LDS, 512

if __name__ == '__main__':
    k, v, lds, blk = gen_k1()
    for p in check(k.lines, k.name): print(p)
```

```python
from asmlib import *
from k1 import UT_OFF, YT_OFF, srd_consts

CH_LDS = 4*4160 + 4608
K2_LDS = 2*CH_LDS + 4*4096

def gen_k2(name='k2_kernel', store_mod='', stamp=None):
    k = K(name)
    k.stamp = stamp
    SH, SU, SY, SD = 8, 12, 16, 20
    k('s_cmp_ge_u32 s2, 256')
    k(f's_cbranch_scc1 L_{name}_end')
    k.stamp_start()
    k(f's_load_dwordx2 s[{SH}:{SH+1}], s[0:1], 32')
    k(f's_load_dwordx2 s[{SD}:{SD+1}], s[0:1], 40')
    k(f's_load_dwordx2 s[{SU}:{SU+1}], s[0:1], 112')
    k('v_lshrrev_b32 v1, 6, v0')
    k('s_and_b32 s3, s2, 7')
    k('s_lshr_b32 s4, s2, 3')
    k('v_readfirstlane_b32 s5, v1')
    k('v_and_b32 v1, 63, v0')
    k('v_and_b32 v2, 15, v0')
    k('v_bfe_u32 v3, v0, 4, 2')
    srd_consts(k, SH, 4096)
    srd_consts(k, SU, 4096)
    srd_consts(k, SY, 4096)
    srd_consts(k, SD, 1024)
    k('s_lshr_b32 s6, s5, 1')
    k('s_and_b32 s7, s5, 1')
    k('s_lshl_b32 s24, s3, 6')
    k('s_lshl_b32 s25, s4, 1')
    k('s_add_u32 s24, s24, s25')
    k('s_add_u32 s24, s24, s6')
    k('s_lshl_b32 s25, s24, 12')
    k(f's_mul_i32 s26, s6, {CH_LDS}')
    k('s_waitcnt lgkmcnt(0)')
    k(f's_add_u32 s{SH}, s{SH}, s25')
    k(f's_addc_u32 s{SH+1}, s{SH+1}, 0')
    k(f's_add_u32 s{SU}, s{SU}, s25')
    k(f's_addc_u32 s{SU+1}, s{SU+1}, 0')
    k(f's_add_u32 s{SY}, s{SU}, {YT_OFF}')
    k(f's_addc_u32 s{SY+1}, s{SU+1}, 0')
    k(f's_add_u32 s{SU}, s{SU}, {UT_OFF}')
    k(f's_addc_u32 s{SU+1}, s{SU+1}, 0')
    k('s_lshl_b32 s27, s7, 11')
    k('v_lshlrev_b32 v4, 4, v1')
    k('s_add_u32 s28, s26, s27')
    k(f's_add_u32 m0, s28, 16640')
    k('v_add_u32 v5, s27, v4')
    for z in range(2):
        k(f'buffer_load_dwordx4 v5, s[{SU}:{SU+3}], 0 offen offset:{z*1024} lds')
    k('s_lshl_b32 s28, s7, 2')
    k('s_sub_u32 s28, 32, s28')
    k('v_add_u32 v6, s28, v4')
    k('v_subrev_u32 v7, 2, v6')
    k('s_mul_i32 s28, s7, 8320')
    k('s_add_u32 s28, s28, s26')
    k('s_add_u32 m0, s28, 64')
    k('s_nop 0')
    for z in range(4):
        k(f'buffer_load_dwordx4 v6, s[{SH}:{SH+3}], 0 offen offset:{z*1024} lds')
    k(f's_add_u32 m0, s28, {64+4160}')
    k('s_nop 0')
    for z in range(4):
        k(f'buffer_load_dwordx4 v7, s[{SH}:{SH+3}], 0 offen offset:{z*1024} lds')
    k('v_bfe_u32 v8, v0, 5, 2')
    k('v_and_b32 v9, 31, v0')
    k('v_sub_u32 v10, v9, v8')
    k('v_subrev_u32 v10, 16, v10')
    k('v_lshlrev_b32 v10, 1, v10')
    k(f'buffer_load_ushort v11, v10, s[{SH}:{SH+3}], 0 offen')
    k('s_lshl_b32 s28, s24, 1')
    k('v_mov_b32 v12, s28')
    k(f'buffer_load_ushort v13, v12, s[{SD}:{SD+3}], 0 offen')
    k('v_mul_u32_u24 v8, 4160, v8')
    k('v_lshlrev_b32 v9, 1, v9')
    k('v_add_u32 v8, v8, v9')
    k('v_add_u32 v8, s26, v8')
    k('v_and_b32 v9, 127, v0')
    k('v_lshlrev_b32 v9, 2, v9')
    k(f's_add_u32 s28, s26, {16640+4096}')
    k('v_add_u32 v9, s28, v9')
    k('v_mov_b32 v14, 0')
    k('ds_write_b32 v9, v14')
    k('v_sub_u32 v14, 15, v2')
    k('v_and_b32 v15, 3, v14')
    k('v_lshrrev_b32 v14, 2, v14')
    k('v_mul_u32_u24 v15, 4160, v15')
    k('v_lshlrev_b32 v14, 3, v14')
    k('v_sub_u32 v15, v15, v14')
    k('v_lshlrev_b32 v14, 4, v3')
    k('v_add_u32 v15, v15, v14')
    k('s_lshl_b32 s29, s7, 8')
    k('s_add_u32 s28, s26, s29')
    k('s_add_u32 s28, s28, 32')
    k('v_add_u32 v20, s28, v15')
    k('v_lshlrev_b32 v15, 5, v2')
    k('v_sub_u32 v16, v14, v15')
    k(f's_add_u32 s28, s26, {16640+480}')
    k('s_add_u32 s28, s28, s29')
    k('v_add_u32 v21, s28, v16')
    k('v_lshlrev_b32 v16, 3, v3')
    k('v_add_u32 v16, v16, v15')
    k('v_add_u32 v22, s27, v16')
    k(f's_add_u32 s28, s26, {16640+4088-1536}')
    k('s_sub_u32 s28, s28, s27')
    k('v_sub_u32 v23, s28, v16')
    k('s_lshl_b32 s28, s5, 12')
    k(f's_add_u32 s28, s28, {2*CH_LDS}')
    k('v_add_u32 v24, s28, v4')
    k('v_xor_b32 v25, 4096, v24')
    k.mark(0)
    k('s_waitcnt vmcnt(1)')
    k('ds_write_b16 v8, v11')
    k('s_waitcnt vmcnt(0) lgkmcnt(0)')
    k('v_lshlrev_b32 v13, 16, v13')
    k('s_barrier')
    k.mark(1)
    ACC = 32
    PA, PB, QA, QB = 64, 96, 128, 160
    def reads(rr, A, B):
        def ra(a): return [f'ds_read_b64 v[{A+4*a+2*h}:{A+4*a+2*h+1}], v20 offset:{512*a+64*rr+8*h}' for h in range(2)]
        def rb(b): return [f'ds_read_b128 v[{B+4*b}:{B+4*b+3}], v21 offset:{512*(7-b)+64*rr}']
        r = rb(0)+ra(0)
        for b in range(1, 8): r += rb(b)
        for a in range(1, 8): r += ra(a)
        return r
    for r in reads(0, PA, PB): k(r)
    k('s_waitcnt lgkmcnt(0)')
    for rr in range(4):
        A, B = (PA, PB) if rr % 2 == 0 else (QA, QB)
        nA, nB = (QA, QB) if rr % 2 == 0 else (PA, PB)
        rd = reads(rr+1, nA, nB) if rr < 3 else []
        first = set()
        for a in range(8):
            for b in range(8-a):
                t = a+b
                d = ACC+4*t
                c = '0' if (rr == 0 and t not in first) else f'v[{d}:{d+3}]'
                first.add(t)
                k(f'v_mfma_f32_16x16x32_bf16 v[{d}:{d+3}], v[{A+4*a}:{A+4*a+3}], v[{B+4*b}:{B+4*b+3}], {c}')
                if rd: k(rd.pop(0))
        if rr < 3: k('s_waitcnt lgkmcnt(0)')
    k.mark(2)
    k.nop(8)
    k('s_cmp_eq_u32 s7, 0')
    k(f's_cbranch_scc0 L_{name}_hw1')
    def epi(keep, give):
        for tau in range(4):
            d = ACC+4*(give+tau)
            k(f'ds_write_b128 v24, v[{d}:{d+3}] offset:{tau*1024}')
        for tau in range(4):
            k(f'ds_read_b64 v[{64+2*tau}:{65+2*tau}], v23 offset:{512*(3-tau)}')
        k('s_waitcnt lgkmcnt(0)')
        k('s_barrier')
        for tau in range(4):
            k(f'ds_read_b128 v[{80+4*tau}:{83+4*tau}], v25 offset:{tau*1024}')
        for tau in range(4):
            u = 96+4*tau
            k(f'v_and_b32 v{u}, 0xffff0000, v{65+2*tau}')
            k(f'v_lshlrev_b32 v{u+1}, 16, v{65+2*tau}')
            k(f'v_and_b32 v{u+2}, 0xffff0000, v{64+2*tau}')
            k(f'v_lshlrev_b32 v{u+3}, 16, v{64+2*tau}')
        for tau in range(4):
            d = ACC+4*(keep+tau); u = 96+4*tau
            for r in range(4):
                k(f'v_fmac_f32 v{d+r}, v{u+r}, v13')
        k('s_waitcnt lgkmcnt(0)')
        for tau in range(4):
            d = ACC+4*(keep+tau); p = 80+4*tau
            k(f'v_pk_add_f32 v[{d}:{d+1}], v[{d}:{d+1}], v[{p}:{p+1}]')
            k(f'v_pk_add_f32 v[{d+2}:{d+3}], v[{d+2}:{d+3}], v[{p+2}:{p+3}]')
            k(f'v_cvt_pk_bf16_f32 v{112+2*tau}, v{d}, v{d+1}')
            k(f'v_cvt_pk_bf16_f32 v{113+2*tau}, v{d+2}, v{d+3}')
            k(f'buffer_store_dwordx2 v[{112+2*tau}:{113+2*tau}], v22, s[{SY}:{SY+3}], 0 offen offset:{512*tau} {store_mod}')
        k.end()
    epi(0, 4)
    k.label(f'L_{name}_hw1')
    epi(4, 0)
    k.label(f'L_{name}_end')
    k('s_endpgm')
    assert (2*CH_LDS) & 0x1000 == 0 or True
    return k, (256 if stamp is not None else 192), K2_LDS, 256

if __name__ == '__main__':
    k, v, lds, blk = gen_k2()
    for p in check(k.lines, k.name): print(p)
```

```python
from asmlib import *
from k1 import HF_OFF, HF_BYTES, YT_OFF, G_OFF, srd_consts

K3_LDS = 65536 + 4*2048

def gen_k3(name='k3_kernel', store_mod='', stamp=None):
    k = K(name)
    k.stamp = stamp
    SHF, SW2, SQ, SY, SG, SB2, SO = 8, 12, 16, 20, 24, 28, 32
    k('s_cmp_ge_u32 s2, 256')
    k(f's_cbranch_scc1 L_{name}_end')
    k.stamp_start()
    k(f's_load_dwordx2 s[{SHF}:{SHF+1}], s[0:1], 112')
    k(f's_load_dwordx2 s[{SW2}:{SW2+1}], s[0:1], 72')
    k(f's_load_dwordx2 s[{SQ}:{SQ+1}], s[0:1], 0')
    k(f's_load_dwordx2 s[{SB2}:{SB2+1}], s[0:1], 80')
    k(f's_load_dwordx2 s[{SO}:{SO+1}], s[0:1], 96')
    k('v_lshrrev_b32 v1, 6, v0')
    k('s_and_b32 s3, s2, 7')
    k('s_lshr_b32 s4, s2, 3')
    k('v_readfirstlane_b32 s5, v1')
    k('v_and_b32 v1, 63, v0')
    k('v_and_b32 v2, 15, v0')
    k('v_bfe_u32 v3, v0, 4, 2')
    srd_consts(k, SHF, HF_BYTES)
    srd_consts(k, SW2, 1792*1024)
    srd_consts(k, SQ, 2097152)
    srd_consts(k, SY, 512*4096)
    srd_consts(k, SG, 8192)
    srd_consts(k, SB2, 1024)
    srd_consts(k, SO, 2097152)
    k('s_lshl_b32 s6, s3, 2')
    k('s_and_b32 s7, s4, 3')
    k('s_add_u32 s36, s6, s7')
    k('s_lshr_b32 s37, s4, 2')
    k('s_mul_i32 s38, s5, 14')
    k('s_mul_i32 s6, s36, 56')
    k('s_add_u32 s6, s6, s38')
    k('s_lshl_b32 s6, s6, 12')
    k('v_lshlrev_b32 v4, 4, v1')
    k('v_add_u32 v5, s6, v4')
    for tau in range(4):
        k(f's_add_u32 s{40+tau}, s5, {tau}')
        k(f's_and_b32 s{40+tau}, s{40+tau}, 3')
        k(f's_lshl_b32 s{40+tau}, s{40+tau}, 10')
    k('v_lshrrev_b32 v10, 3, v1')
    k('v_lshlrev_b32 v10, 10, v10')
    k('v_and_b32 v11, 7, v1')
    k('v_lshlrev_b32 v12, 1, v3')
    k('v_xor_b32 v11, v11, v12')
    k('v_lshlrev_b32 v11, 4, v11')
    k('v_add_u32 v10, v10, v11')
    k('s_lshl_b32 s39, s37, 7')
    k('v_add_u32 v6, s39, v10')
    for jj in range(1, 4):
        k(f'v_add_u32 v{6+jj}, {jj*7168}, v6')
    k('s_lshl_b32 s44, s38, 15')
    k('s_lshl_b32 s45, s5, 14')
    k('s_waitcnt lgkmcnt(0)')
    k(f's_add_u32 s{SY}, s{SHF}, {YT_OFF}')
    k(f's_addc_u32 s{SY+1}, s{SHF+1}, 0')
    k(f's_add_u32 s{SG}, s{SHF}, {G_OFF}')
    k(f's_addc_u32 s{SG+1}, s{SHF+1}, 0')
    BR = 128
    def issue(i):
        slot = i % 4
        k(f's_add_u32 m0, s45, {slot*4096}')
        k(f's_add_u32 s46, s44, {i*32768}')
        out = []
        for jj in range(4):
            out.append(f'buffer_load_dwordx4 v{6+jj}, s[{SW2}:{SW2+3}], s46 offen offset:{jj*1024} lds')
        return out
    def bload(i, tau):
        slot = i % 4
        b = BR + slot*16 + tau*4
        return f'buffer_load_dwordx4 v[{b}:{b+3}], v5, s[{SHF}:{SHF+3}], s{40+tau} offen'
    k('s_lshl_b32 s6, s36, 6')
    k('s_lshl_b32 s7, s5, 4')
    k('s_add_u32 s47, s6, s7')
    k('v_add_u32 v13, s47, v2')
    k('v_lshlrev_b32 v14, 10, v13')
    k('v_lshlrev_b32 v15, 3, v3')
    k('v_add_u32 v15, s39, v15')
    k('v_add_u32 v14, v14, v15')
    k('v_lshrrev_b32 v16, 1, v1')
    k('v_lshlrev_b32 v16, 12, v16')
    k('v_and_b32 v17, 1, v1')
    k('v_lshlrev_b32 v17, 4, v17')
    k('v_add_u32 v16, v16, v17')
    k('s_lshl_b32 s6, s37, 18')
    k('s_lshl_b32 s7, s47, 1')
    k('s_add_u32 s6, s6, s7')
    k('v_add_u32 v16, s6, v16')
    k('v_add_u32 v17, 0x20000, v16')
    k('s_lshl_b32 s48, s5, 11')
    k('s_add_u32 s48, s48, 65536')
    k('s_mov_b32 m0, s48')
    k('v_lshlrev_b32 v18, 2, v13')
    k(f'buffer_load_dwordx4 v16, s[{SY}:{SY+3}], 0 offen lds')
    k('s_add_u32 m0, s48, 1024')
    k('s_nop 0')
    k(f'buffer_load_dwordx4 v17, s[{SY}:{SY+3}], 0 offen lds')
    for T in range(4):
        k(f'buffer_load_dwordx2 v[{40+2*T}:{41+2*T}], v14, s[{SQ}:{SQ+3}], 0 offen offset:{T*32}')
    for T in range(4):
        k(f'buffer_load_dwordx2 v[{48+2*T}:{49+2*T}], v15, s[{SB2}:{SB2+3}], 0 offen offset:{T*32}')
    k(f'buffer_load_dword v56, v18, s[{SG}:{SG+3}], 0 offen')
    for i in range(4):
        for x in issue(i): k(x)
        for tau in range(4): k(bload(i, tau))
        k('v_add_u32 v5, 4096, v5')
    k('v_lshrrev_b32 v20, 2, v2')
    k('v_lshlrev_b32 v21, 2, v3')
    k('v_add_u32 v21, v21, v20')
    k('v_lshlrev_b32 v21, 7, v21')
    k('v_lshlrev_b32 v22, 1, v3')
    k('v_lshrrev_b32 v23, 3, v2')
    k('v_add_u32 v22, v22, v23')
    k('v_and_b32 v22, 3, v22')
    k('v_lshlrev_b32 v22, 5, v22')
    k('v_bfe_u32 v23, v2, 1, 1')
    k('v_lshlrev_b32 v23, 4, v23')
    k('v_add_u32 v21, v21, v23')
    k('v_and_b32 v23, 1, v2')
    k('v_lshlrev_b32 v23, 3, v23')
    k('v_add_u32 v21, v21, v23')
    k('v_add_u32 v21, s45, v21')
    for T in range(4):
        k(f'v_xor_b32 v23, {T*32}, v22')
        k(f'v_add_u32 v{24+T}, v21, v23')
    k('v_add_u32 v28, s45, v4')
    for tau in range(1, 4):
        k(f's_sub_u32 s6, s5, {tau}')
        k('s_and_b32 s6, s6, 3')
        k('s_lshl_b32 s6, s6, 14')
        k(f'v_add_u32 v{28+tau}, s6, v4')
    k('v_lshlrev_b32 v32, 3, v1')
    k('v_add_u32 v32, s48, v32')
    ACC = 64
    AP, AQ = 192, 208
    def areads(i, A):
        slot = i % 4
        r = []
        for T in range(4):
            for h in range(2):
                r.append(f'ds_read_b64_tr_b16 v[{A+4*T+2*h}:{A+4*T+2*h+1}], v{24+T} offset:{slot*4096+h*2048}')
        return r
    N = 14
    k.mark(0)
    k('s_waitcnt vmcnt(28)')
    k.mark(1)
    for r in areads(0, AP): k(r)
    for i in range(N):
        A = AP if i % 2 == 0 else AQ
        nA = AQ if i % 2 == 0 else AP
        last = min(i+3, N-1)
        if i+1 < N:
            n = 4 + 8*(last-(i+1))
        else:
            n = 0
        k(f's_waitcnt vmcnt({n}) lgkmcnt(0)')
        if i == 4: k.mark(2)
        if i == 9: k.mark(3)
        rd = areads(i+1, nA) if i+1 < N else []
        dma = []
        if i+4 < N:
            slot = i % 4
            k(f's_add_u32 m0, s45, {slot*4096}')
            k(f's_add_u32 s46, s44, {(i+4)*32768}')
            dma = [f'buffer_load_dwordx4 v{6+jj}, s[{SW2}:{SW2+3}], s46 offen offset:{jj*1024} lds' for jj in range(4)]
        slot = i % 4
        for tau in range(4):
            for T in range(4):
                d = ACC + (tau*4+T)*4
                b = BR + slot*16 + tau*4
                c = '0' if i == 0 else f'v[{d}:{d+3}]'
                k(f'v_mfma_f32_16x16x32_bf16 v[{d}:{d+3}], v[{A+4*T}:{A+4*T+3}], v[{b}:{b+3}], {c}')
                if rd: k(rd.pop(0))
                elif dma: k(dma.pop(0))
        assert not dma and not rd
        if i+4 < N:
            for tau in range(4): k(bload(i+4, tau))
            k('v_add_u32 v5, 4096, v5')
    k.mark(4)
    k.nop(8)
    for tau in range(1, 4):
        for T in range(4):
            d = ACC + (tau*4+T)*4
            k(f'ds_write_b128 v28, v[{d}:{d+3}] offset:{tau*4096+T*1024}')
    for T in range(4):
        k(f'ds_read_b64_tr_b16 v[{128+2*T}:{129+2*T}], v32 offset:{T*512}')
    k('s_waitcnt lgkmcnt(0)')
    k('s_barrier')
    k.mark(5)
    for tau in range(1, 4):
        for T in range(4):
            p = 144 + ((tau-1)*4+T)*4
            k(f'ds_read_b128 v[{p}:{p+3}], v{28+tau} offset:{tau*4096+T*1024}')
    k('v_sub_f32 v57, 1.0, v56')
    for T in range(4):
        k(f'v_lshlrev_b32 v96, 16, v{40+2*T}')
        k(f'v_and_b32 v97, 0xffff0000, v{40+2*T}')
        k(f'v_lshlrev_b32 v98, 16, v{41+2*T}')
        k(f'v_and_b32 v99, 0xffff0000, v{41+2*T}')
        k(f'v_lshlrev_b32 v100, 16, v{128+2*T}')
        k(f'v_and_b32 v101, 0xffff0000, v{128+2*T}')
        k(f'v_lshlrev_b32 v102, 16, v{129+2*T}')
        k(f'v_and_b32 v103, 0xffff0000, v{129+2*T}')
        k(f'v_pk_mul_f32 v[96:97], v[96:97], v[100:101]')
        k(f'v_pk_mul_f32 v[98:99], v[98:99], v[102:103]')
        a = 108 + 4*T
        for r in range(4):
            k(f'v_mul_f32 v{a+r}, v56, v{96+r}')
        k(f'v_lshlrev_b32 v104, 16, v{48+2*T}')
        k(f'v_and_b32 v105, 0xffff0000, v{48+2*T}')
        k(f'v_lshlrev_b32 v106, 16, v{49+2*T}')
        k(f'v_and_b32 v107, 0xffff0000, v{49+2*T}')
        d = ACC + T*4
        k(f'v_pk_add_f32 v[{d}:{d+1}], v[{d}:{d+1}], v[104:105]')
        k(f'v_pk_add_f32 v[{d+2}:{d+3}], v[{d+2}:{d+3}], v[106:107]')
    k('s_waitcnt lgkmcnt(0)')
    for T in range(4):
        d = ACC + T*4
        for tau in range(1, 4):
            p = 144 + ((tau-1)*4+T)*4
            k(f'v_pk_add_f32 v[{d}:{d+1}], v[{d}:{d+1}], v[{p}:{p+1}]')
            k(f'v_pk_add_f32 v[{d+2}:{d+3}], v[{d+2}:{d+3}], v[{p+2}:{p+3}]')
        a = 108 + 4*T
        for r in range(4):
            k(f'v_fma_f32 v{d+r}, v57, v{d+r}, v{a+r}')
        k(f'v_cvt_pk_bf16_f32 v{132+2*T}, v{d}, v{d+1}')
        k(f'v_cvt_pk_bf16_f32 v{133+2*T}, v{d+2}, v{d+3}')
        k(f'buffer_store_dwordx2 v[{132+2*T}:{133+2*T}], v14, s[{SO}:{SO+3}], 0 offen offset:{T*32} {store_mod}')
    k.end()
    k.label(f'L_{name}_end')
    k('s_endpgm')
    return k, (256 if stamp is not None else 224), K3_LDS, 256

if __name__ == '__main__':
    k, v, lds, blk = gen_k3()
    for p in check(k.lines, k.name): print(p)
```

```python
from asmlib import *
from lay import *

SHF, SW2, SQ, SY, SG, SB2, SO, SH, SU, SFL, SDBG = 8, 12, 16, 20, 24, 28, 32, 36, 40, 44, 48
sT64, sD64, sTAU, sK0, sRING, sSOFF, sTOK0, sNONCE = 52, 53, 54, 58, 59, 60, 61, 62
SPIN_MAX = 200000

def poll_loop(k, name, loads, cond_ok, vq=None):
    k('s_mov_b32 s63, 0')
    k.label(f'L_{name}')
    for l in loads: k(l)
    k('s_waitcnt vmcnt(0)')
    cond_ok()
    k(f's_cbranch_scc1 L_{name}_ok')
    k('s_add_u32 s63, s63, 1')
    k(f's_cmp_lt_u32 s63, {SPIN_MAX}')
    k(f's_cbranch_scc1 L_{name}')
    k.label(f'L_{name}_ok')

def lds_spin(k, name, vaddr, off, val, vtmp):
    k('s_mov_b32 s63, 0')
    k.label(f'L_{name}')
    k(f'ds_read_b32 v{vtmp}, v{vaddr} offset:{off}')
    k('s_waitcnt lgkmcnt(0)')
    k(f'v_readfirstlane_b32 s64, v{vtmp}')
    k(f's_cmp_ge_u32 s64, {val}')
    k(f's_cbranch_scc1 L_{name}_ok')
    k('s_add_u32 s63, s63, 1')
    k(f's_cmp_lt_u32 s63, {SPIN_MAX*16}')
    k(f's_cbranch_scc1 L_{name}')
    k.label(f'L_{name}_ok')

def load_ptrs_g2(k):
    k(f's_load_dwordx2 s[{SHF}:{SHF+1}], s[0:1], 112')
    k(f's_load_dwordx2 s[{SW2}:{SW2+1}], s[0:1], 72')
    k(f's_load_dwordx2 s[{SQ}:{SQ+1}], s[0:1], 0')
    k(f's_load_dwordx2 s[{SB2}:{SB2+1}], s[0:1], 80')
    k(f's_load_dwordx2 s[{SO}:{SO+1}], s[0:1], 96')
    k(f's_load_dwordx2 s[{SH}:{SH+1}], s[0:1], 32')
    k(f's_load_dwordx2 s[{SDBG}:{SDBG+1}], s[0:1], 104')

def g2_setup(k):
    srd_consts(k, SHF, HF_BYTES)
    srd_consts(k, SW2, 1792*1024)
    srd_consts(k, SQ, 2097152)
    srd_consts(k, SY, 512*4096)
    srd_consts(k, SG, 8192)
    srd_consts(k, SB2, 1024)
    srd_consts(k, SO, 2097152)
    srd_consts(k, SH, 8192)
    srd_consts(k, SU, 8192)
    srd_consts(k, SFL, FL_BYTES)
    srd_consts(k, SDBG, 256)
    k('s_and_b32 s6, s3, 3')
    k('s_lshl_b32 s6, s6, 3')
    k('s_lshr_b32 s7, s3, 2')
    k('s_lshl_b32 s7, s7, 2')
    k('s_add_u32 s6, s6, s7')
    k('s_and_b32 s7, s4, 3')
    k(f's_add_u32 s{sT64}, s6, s7')
    k(f's_lshr_b32 s{sD64}, s4, 2')
    k('s_mul_i32 s65, s5, 14')
    k(f's_mul_i32 s6, s{sT64}, 56')
    k('s_add_u32 s6, s6, s65')
    k('s_lshl_b32 s6, s6, 12')
    k('v_lshlrev_b32 v4, 4, v1')
    k('v_add_u32 v5, s6, v4')
    for tau in range(4):
        k(f's_add_u32 s{sTAU+tau}, s5, {tau}')
        k(f's_and_b32 s{sTAU+tau}, s{sTAU+tau}, 3')
        k(f's_lshl_b32 s{sTAU+tau}, s{sTAU+tau}, 10')
    k('v_lshrrev_b32 v10, 3, v1')
    k('v_lshlrev_b32 v10, 10, v10')
    k('v_and_b32 v11, 7, v1')
    k('v_lshlrev_b32 v12, 1, v3')
    k('v_xor_b32 v11, v11, v12')
    k('v_lshlrev_b32 v11, 4, v11')
    k('v_add_u32 v10, v10, v11')
    k(f's_lshl_b32 s66, s{sD64}, 7')
    k('v_add_u32 v6, s66, v10')
    for jj in range(1, 4):
        k(f'v_add_u32 v{6+jj}, {jj*7168}, v6')
    k(f's_lshl_b32 s{sK0}, s65, 15')
    k(f's_lshl_b32 s{sRING}, s5, 12')
    k(f's_add_u32 s{sRING}, s{sRING}, {BLK0}')
    k('s_lshl_b32 s6, s3, 6')
    k('s_lshl_b32 s7, s4, 1')
    k('s_add_u32 s6, s6, s7')
    k('s_lshl_b32 s67, s6, 12')
    k('s_lshl_b32 s6, s5, 1')
    k('s_sub_u32 s6, 32, s6')
    k('v_add_u32 v18, s6, v4')
    k('v_add_u32 v19, 4096, v18')
    k('v_and_b32 v20, 31, v1')
    k('s_add_u32 s6, s5, 16')
    k('v_subrev_u32 v21, s6, v20')
    k('v_lshlrev_b32 v21, 1, v21')
    k('v_lshrrev_b32 v22, 5, v1')
    k('v_lshlrev_b32 v23, 12, v22')
    k('v_add_u32 v23, v23, v21')
    k('v_cmp_gt_i32 vcc, 0, v21')
    k('v_mov_b32 v24, 0x7fffffff')
    k('s_mul_i32 s6, s5, 4160')
    k('v_cndmask_b32 v21, v23, v24, vcc')
    k('v_lshlrev_b32 v20, 1, v20')
    k('v_add_u32 v20, s6, v20')
    k(f'v_mul_u32_u24 v22, {H0B-H1B}, v22')
    k(f'v_sub_u32 v22, {H0B}, v22')
    k('v_add_u32 v20, v20, v22')
    k('s_lshl_b32 s6, s5, 10')
    k('v_add_u32 v22, s6, v4')
    k('v_add_u32 v23, 4096, v22')

def g2_ptr_fix(k):
    k(f's_add_u32 s{SY}, s{SHF}, {YT_OFF}')
    k(f's_addc_u32 s{SY+1}, s{SHF+1}, 0')
    k(f's_add_u32 s{SG}, s{SHF}, {G_OFF}')
    k(f's_addc_u32 s{SG+1}, s{SHF+1}, 0')
    k(f's_add_u32 s{SFL}, s{SHF}, {FL_OFF}')
    k(f's_addc_u32 s{SFL+1}, s{SHF+1}, 0')
    k(f's_add_u32 s{SU}, s{SHF}, {UT_OFF}')
    k(f's_addc_u32 s{SU+1}, s{SHF+1}, 0')
    k(f's_add_u32 s{SU}, s{SU}, s67')
    k(f's_addc_u32 s{SU+1}, s{SU+1}, 0')
    k(f's_add_u32 s{SH}, s{SH}, s67')
    k(f's_addc_u32 s{SH+1}, s{SH+1}, 0')

def g2_conv_loads_H(k, vq, ch):
    base = (H0B if ch == 0 else H1B) + 64
    k('s_mul_i32 s6, s5, 4160')
    k(f's_add_u32 m0, s6, {base}')
    k('s_nop 0')
    for z in range(4):
        vq.issue(f'buffer_load_dwordx4 v{18+ch}, s[{SH}:{SH+3}], 0 offen offset:{z*1024} lds', f'H{ch}')

def g2_conv_loads_U(k, vq, mod=''):
    for ch in range(2):
        k('s_lshl_b32 s6, s5, 10')
        k(f's_add_u32 m0, s6, {U0B if ch == 0 else U1B}')
        k('s_nop 0')
        vq.issue(f'buffer_load_dwordx4 v{22+ch}, s[{SU}:{SU+3}], 0 offen lds {mod}', 'U')

def g2_conv_head_load(k, vq):
    vq.issue(f'buffer_load_ushort v25, v21, s[{SH}:{SH+3}], 0 offen', 'head')

def g2_zero_pad(k):
    k('s_lshr_b32 s6, s5, 1')
    k(f's_mul_i32 s6, s6, {U1B-U0B}')
    k('s_and_b32 s7, s5, 1')
    k('s_lshl_b32 s7, s7, 8')
    k('s_add_u32 s6, s6, s7')
    k(f's_add_u32 s6, s6, {U0B+4096}')
    k('v_lshlrev_b32 v26, 2, v1')
    k('v_add_u32 v26, s6, v26')
    k('v_mov_b32 v27, 0')
    k('ds_write_b32 v26, v27')

def g2_addr2(k):
    k('v_lshrrev_b32 v20, 2, v2')
    k('v_lshlrev_b32 v21, 2, v3')
    k('v_add_u32 v21, v21, v20')
    k('v_lshlrev_b32 v21, 7, v21')
    k('v_lshlrev_b32 v22, 1, v3')
    k('v_lshrrev_b32 v23, 3, v2')
    k('v_add_u32 v22, v22, v23')
    k('v_and_b32 v22, 3, v22')
    k('v_lshlrev_b32 v22, 5, v22')
    k('v_bfe_u32 v23, v2, 1, 1')
    k('v_lshlrev_b32 v23, 4, v23')
    k('v_add_u32 v21, v21, v23')
    k('v_and_b32 v23, 1, v2')
    k('v_lshlrev_b32 v23, 3, v23')
    k('v_add_u32 v21, v21, v23')
    k(f'v_add_u32 v21, s{sRING}, v21')
    for T in range(4):
        k(f'v_xor_b32 v23, {T*32}, v22')
        k(f'v_add_u32 v{10+T}, v21, v23')
        k(f'v_add_u32 v{14+T}, 0x10000, v{10+T}')

ACC = 32
AB0 = 96

class G2:
    def __init__(self, k, vq, NA, NB, hfmod=''):
        self.k, self.vq, self.NA, self.NB, self.hfmod = k, vq, NA, NB, hfmod
        self.AR = AB0
        self.BR = AB0 + 16*NA
        assert self.BR + 16*NB <= 240
    def dma(self, kap, inter=None):
        k = self.k
        blk = kap % NBLK
        k(f's_add_u32 m0, s{sRING}, {blk*16384}')
        k(f's_add_u32 s{sSOFF}, s{sK0}, {kap*32768}')
        lst = [(f'buffer_load_dwordx4 v{6+jj}, s[{SW2}:{SW2+3}], s{sSOFF} offen offset:{jj*1024} lds', f'W{kap}') for jj in range(4)]
        if inter is None:
            for t, tag in lst: self.vq.issue(t, tag)
        else:
            inter.extend(lst)
    def bload(self, kap):
        slot = kap % self.NB
        for tau in range(4):
            b = self.BR + slot*16 + tau*4
            self.vq.issue(f'buffer_load_dwordx4 v[{b}:{b+3}], v5, s[{SHF}:{SHF+3}], s{sTAU+tau} offen {self.hfmod}', f'B{kap}')
        self.k('v_add_u32 v5, 4096, v5')
    def areads(self, kap):
        blk = kap % NBLK
        A = self.AR + 16*(kap % self.NA)
        r = []
        for T in range(4):
            for h in range(2):
                vb = (10 if blk < 4 else 14) + T
                off = (blk % 4)*16384 + h*2048
                r.append(f'ds_read_b64_tr_b16 v[{A+4*T+2*h}:{A+4*T+2*h+1}], v{vb} offset:{off}')
        return r

def g2_epi_addr(k):
    k(f's_lshl_b32 s6, s{sT64}, 6')
    k('s_lshl_b32 s7, s5, 4')
    k(f's_add_u32 s{sTOK0}, s6, s7')
    k(f'v_add_u32 v22, s{sTOK0}, v2')
    k('v_lshlrev_b32 v20, 10, v22')
    k('v_lshlrev_b32 v21, 3, v3')
    k(f's_lshl_b32 s66, s{sD64}, 7')
    k('v_add_u32 v21, s66, v21')
    k('v_add_u32 v20, v20, v21')
    k('v_lshlrev_b32 v22, 2, v22')
    k('v_lshrrev_b32 v23, 1, v1')
    k('v_lshlrev_b32 v23, 12, v23')
    k('v_and_b32 v24, 1, v1')
    k('v_lshlrev_b32 v24, 4, v24')
    k('v_add_u32 v23, v23, v24')
    k(f's_lshl_b32 s6, s{sD64}, 18')
    k(f's_lshl_b32 s7, s{sTOK0}, 1')
    k('s_add_u32 s6, s6, s7')
    k('v_add_u32 v23, s6, v23')
    k('v_add_u32 v24, 0x20000, v23')
    k('v_lshlrev_b32 v25, 3, v1')
    k(f's_add_u32 s6, s{sRING}, {4*16384}')
    k('v_add_u32 v25, s6, v25')
    k(f'v_add_u32 v26, s{sRING}, v4')
    for tau in range(1, 4):
        k(f's_sub_u32 s6, s5, {tau}')
        k('s_and_b32 s6, s6, 3')
        k('s_lshl_b32 s6, s6, 12')
        k(f's_add_u32 s6, s6, {BLK0}')
        k(f'v_add_u32 v{26+tau}, s6, v4')
    k(f's_lshl_b32 s6, s{sD64}, 9')
    k(f's_lshr_b32 s7, s{sT64}, 4')
    k('s_lshl_b32 s7, s7, 8')
    k('s_add_u32 s6, s6, s7')
    k(f's_add_u32 s6, s6, {YTF}')
    k('v_lshlrev_b32 v30, 2, v1')
    k('v_add_u32 v30, s6, v30')
    k('v_mov_b32 v31, 0')

def g2_main(k, g, name, pre, fused=False):
    vq, NA, NB = g.vq, g.NA, g.NB
    N = 14
    nxt_tr = pre
    nxt_dma = min(N, NBLK + pre)
    fs = [ (i % NB) for i in range(N-NB, N) ]
    QR = g.BR + 16*fs[0]
    GR = g.BR + 16*fs[1]
    pend_dma = []
    for i in range(N):
        tr = None
        if nxt_tr < N and nxt_tr <= i - 1 + NA:
            tr = nxt_tr; nxt_tr += 1
        tags = [f'B{i}'] + ([f'W{tr}'] if tr is not None else [])
        vq.wait(tags, lgkm=0)
        if i == 4: k.mark(2)
        if i == 9: k.mark(3)
        if i == N-NB+3:
            vq.wait('poll')
            k(f'v_readfirstlane_b32 s{sNONCE}, v{GR+1}')
            k(f'v_cmp_eq_u32 vcc, v{GR+1}, v{GR+2}')
            k(f's_cmp_eq_u32 s{sNONCE}, 0')
            k(f's_cbranch_scc1 L_{name}_yslow')
            k('s_cmp_eq_u64 vcc, -1')
            k(f's_cbranch_scc0 L_{name}_yslow')
            k.label(f'L_{name}_yok')
            k(f's_add_u32 m0, s{sRING}, {4*16384}')
            k('s_nop 0')
            vq.issue(f'buffer_load_dwordx4 v23, s[{SY}:{SY+3}], 0 offen sc1 lds', 'y')
            k(f's_add_u32 m0, s{sRING}, {4*16384+1024}')
            k('s_nop 0')
            vq.issue(f'buffer_load_dwordx4 v24, s[{SY}:{SY+3}], 0 offen sc1 lds', 'y')
        rd = g.areads(tr) if tr is not None else []
        dma = []
        if nxt_dma < N and (nxt_dma - NBLK) < (nxt_tr - (1 if tr is not None else 0)):
            g.dma(nxt_dma, dma); nxt_dma += 1
        A = g.AR + 16*(i % NA)
        slot = i % NB
        for tau in range(4):
            for T in range(4):
                d = ACC + (tau*4+T)*4
                b = g.BR + slot*16 + tau*4
                c = '0' if i == 0 else f'v[{d}:{d+3}]'
                k(f'v_mfma_f32_16x16x32_bf16 v[{d}:{d+3}], v[{A+4*T}:{A+4*T+3}], v[{b}:{b+3}], {c}')
                if rd: k(rd.pop(0))
                elif dma:
                    t, tag = dma.pop(0); vq.issue(t, tag)
        assert not dma and not rd
        if i + NB < N:
            g.bload(i+NB)
        if i == N-NB:
            for T in range(4):
                vq.issue(f'buffer_load_dwordx2 v[{QR+2*T}:{QR+2*T+1}], v20, s[{SQ}:{SQ+3}], 0 offen offset:{T*32}', 'q')
            for T in range(4):
                vq.issue(f'buffer_load_dwordx2 v[{QR+8+2*T}:{QR+8+2*T+1}], v21, s[{SB2}:{SB2+3}], 0 offen offset:{T*32}', 'q')
        if i == N-NB+1:
            vq.issue(f'buffer_load_dword v{GR}, v22, s[{SG}:{SG+3}], 0 offen sc1', 'q')
            vq.issue(f'buffer_load_dword v{GR+1}, v31, s[{SDBG}:{SDBG+3}], 0 offen sc1', 'poll')
            vq.issue(f'buffer_load_dword v{GR+2}, v30, s[{SFL}:{SFL+3}], 0 offen sc1', 'poll')
    assert nxt_dma == N and nxt_tr == N
    k.mark(4)
    k.nop(8)
    for tau in range(1, 4):
        for T in range(4):
            d = ACC + (tau*4+T)*4
            k(f'ds_write_b128 v26, v[{d}:{d+3}] offset:{tau*16384+T*1024}')
    vq.wait(['y', 'q'])
    YR = GR + 8
    for T in range(4):
        k(f'ds_read_b64_tr_b16 v[{YR+2*T}:{YR+2*T+1}], v25 offset:{T*512}')
    k('s_waitcnt lgkmcnt(0)')
    k('s_barrier')
    k.mark(5)
    P0 = g.AR
    free = []
    for s in range(NA): free += list(range(g.AR+16*s, g.AR+16*s+16))
    for s in range(NB):
        if s not in (fs[0], fs[1]): free += list(range(g.BR+16*s, g.BR+16*s+16))
    quads = [r for r in free if r % 4 == 0 and all((r+i) in free for i in range(4))]
    pq = quads[:12]; aq = quads[12:16]; tq = quads[16:19]
    for tau in range(1, 4):
        for T in range(4):
            p = pq[(tau-1)*4+T]
            k(f'ds_read_b128 v[{p}:{p+3}], v{26+tau} offset:{tau*16384+T*1024}')
    k(f'v_sub_f32 v{GR+3}, 1.0, v{GR}')
    t0, t1, t2 = tq
    for T in range(4):
        k(f'v_lshlrev_b32 v{t0}, 16, v{QR+2*T}')
        k(f'v_and_b32 v{t0+1}, 0xffff0000, v{QR+2*T}')
        k(f'v_lshlrev_b32 v{t0+2}, 16, v{QR+1+2*T}')
        k(f'v_and_b32 v{t0+3}, 0xffff0000, v{QR+1+2*T}')
        k(f'v_lshlrev_b32 v{t1}, 16, v{YR+2*T}')
        k(f'v_and_b32 v{t1+1}, 0xffff0000, v{YR+2*T}')
        k(f'v_lshlrev_b32 v{t1+2}, 16, v{YR+1+2*T}')
        k(f'v_and_b32 v{t1+3}, 0xffff0000, v{YR+1+2*T}')
        k(f'v_pk_mul_f32 v[{t0}:{t0+1}], v[{t0}:{t0+1}], v[{t1}:{t1+1}]')
        k(f'v_pk_mul_f32 v[{t0+2}:{t0+3}], v[{t0+2}:{t0+3}], v[{t1+2}:{t1+3}]')
        a = aq[T]
        for r in range(4):
            k(f'v_mul_f32 v{a+r}, v{GR}, v{t0+r}')
        k(f'v_lshlrev_b32 v{t2}, 16, v{QR+8+2*T}')
        k(f'v_and_b32 v{t2+1}, 0xffff0000, v{QR+8+2*T}')
        k(f'v_lshlrev_b32 v{t2+2}, 16, v{QR+9+2*T}')
        k(f'v_and_b32 v{t2+3}, 0xffff0000, v{QR+9+2*T}')
        d = ACC + T*4
        k(f'v_pk_add_f32 v[{d}:{d+1}], v[{d}:{d+1}], v[{t2}:{t2+1}]')
        k(f'v_pk_add_f32 v[{d+2}:{d+3}], v[{d+2}:{d+3}], v[{t2+2}:{t2+3}]')
    k('s_waitcnt lgkmcnt(0)')
    for T in range(4):
        d = ACC + T*4
        for tau in range(1, 4):
            p = pq[(tau-1)*4+T]
            k(f'v_pk_add_f32 v[{d}:{d+1}], v[{d}:{d+1}], v[{p}:{p+1}]')
            k(f'v_pk_add_f32 v[{d+2}:{d+3}], v[{d+2}:{d+3}], v[{p+2}:{p+3}]')
        a = aq[T]
        for r in range(4):
            k(f'v_fma_f32 v{d+r}, v{GR+3}, v{d+r}, v{a+r}')
        k(f'v_cvt_pk_bf16_f32 v{GR+4+2*(T%2)}, v{d}, v{d+1}')
        k(f'v_cvt_pk_bf16_f32 v{GR+5+2*(T%2)}, v{d+2}, v{d+3}')
        k(f'buffer_store_dwordx2 v[{GR+4+2*(T%2)}:{GR+5+2*(T%2)}], v20, s[{SO}:{SO+3}], 0 offen offset:{T*32}')
    k.end()
    k.label(f'L_{name}_yslow')
    def ok():
        k(f'v_readfirstlane_b32 s{sNONCE}, v{GR+1}')
        k(f'v_cmp_eq_u32 vcc, v{GR+1}, v{GR+2}')
        k('s_cmp_eq_u64 vcc, -1')
        k('s_cselect_b32 s64, 1, 0')
        k(f's_cmp_lg_u32 s{sNONCE}, 0')
        k('s_cselect_b32 s64, s64, 0')
        k('s_cmp_eq_u32 s64, 1')
    poll_loop(k, f'{name}_ypoll', [f'buffer_load_dword v{GR+1}, v31, s[{SDBG}:{SDBG+3}], 0 offen sc1',
                                   f'buffer_load_dword v{GR+2}, v30, s[{SFL}:{SFL+3}], 0 offen sc1'], ok)
    k(f's_branch L_{name}_yok')

cSY, cSD, cSFL, cSDBG = 8, 12, 16, 20

def conv_load_ptrs(k):
    k(f's_load_dwordx2 s[{cSY}:{cSY+1}], s[0:1], 112')
    k(f's_load_dwordx2 s[{cSD}:{cSD+1}], s[0:1], 40')
    k(f's_load_dwordx2 s[{cSDBG}:{cSDBG+1}], s[0:1], 104')

def conv_setup(k):
    srd_consts(k, cSY, 4096)
    srd_consts(k, cSD, 1024)
    srd_consts(k, cSFL, FL_BYTES)
    srd_consts(k, cSDBG, 256)
    k('s_lshr_b32 s6, s5, 1')
    k('s_and_b32 s7, s5, 1')
    k('s_lshl_b32 s24, s3, 6')
    k('s_lshl_b32 s25, s4, 1')
    k('s_add_u32 s24, s24, s25')
    k('s_add_u32 s24, s24, s6')
    k('s_lshl_b32 s25, s24, 12')
    k(f's_mul_i32 s26, s6, {H0B-H1B}')
    k(f's_sub_u32 s26, {H0B}, s26')
    k(f's_mul_i32 s30, s6, {U1B-U0B}')
    k(f's_add_u32 s30, s30, {U0B}')
    k('s_lshl_b32 s27, s7, 11')
    k('v_lshlrev_b32 v4, 4, v1')
    k('v_sub_u32 v14, 15, v2')
    k('v_and_b32 v15, 3, v14')
    k('v_lshrrev_b32 v14, 2, v14')
    k('v_mul_u32_u24 v15, 4160, v15')
    k('v_lshlrev_b32 v14, 3, v14')
    k('v_sub_u32 v15, v15, v14')
    k('v_lshlrev_b32 v14, 4, v3')
    k('v_add_u32 v15, v15, v14')
    k('s_lshl_b32 s29, s7, 8')
    k('s_add_u32 s28, s26, s29')
    k('s_add_u32 s28, s28, 32')
    k('v_add_u32 v20, s28, v15')
    k('v_lshlrev_b32 v15, 5, v2')
    k('v_sub_u32 v16, v14, v15')
    k('s_add_u32 s28, s30, 480')
    k('s_add_u32 s28, s28, s29')
    k('v_add_u32 v21, s28, v16')
    k('v_lshlrev_b32 v16, 3, v3')
    k('v_add_u32 v16, v16, v15')
    k('v_add_u32 v22, s27, v16')
    k(f's_add_u32 s28, s30, {4088-1536}')
    k('s_sub_u32 s28, s28, s27')
    k('v_sub_u32 v23, s28, v16')
    k('s_lshl_b32 s28, s5, 12')
    k(f's_add_u32 s28, s28, {RB}')
    k('v_add_u32 v24, s28, v4')
    k('v_xor_b32 v25, 4096, v24')
    assert RB & 0x3000 == 0
    k(f'v_mov_b32 v26, {FLG}')
    k('s_lshl_b32 s28, s3, 9')
    k('s_lshl_b32 s29, s7, 8')
    k('s_add_u32 s28, s28, s29')
    k('s_lshl_b32 s29, s4, 3')
    k('s_add_u32 s28, s28, s29')
    k('s_lshl_b32 s29, s6, 2')
    k('s_add_u32 s28, s28, s29')
    k(f's_add_u32 s31, s28, {YTF}')
    k('s_lshl_b32 s28, s24, 1')
    k('v_mov_b32 v12, s28')
    k('v_mov_b32 v27, 0')

def conv_ptr_fix(k):
    k(f's_add_u32 s{cSFL}, s{cSY}, {FL_OFF}')
    k(f's_addc_u32 s{cSFL+1}, s{cSY+1}, 0')
    k(f's_add_u32 s{cSY}, s{cSY}, {YT_OFF}')
    k(f's_addc_u32 s{cSY+1}, s{cSY+1}, 0')
    k(f's_add_u32 s{cSY}, s{cSY}, s25')
    k(f's_addc_u32 s{cSY+1}, s{cSY+1}, 0')

def conv_main(k, name):
    k(f'buffer_load_ushort v13, v12, s[{cSD}:{cSD+3}], 0 offen')
    k(f'buffer_load_dword v28, v27, s[{cSDBG}:{cSDBG+3}], 0 offen sc1')
    k('s_lshl_b32 s28, s6, 2')
    k('v_add_u32 v29, s28, v26')
    k.mark(0)
    lds_spin(k, f'{name}_rdy', 29, RDY0, 4, 30)
    k.mark(1)
    CACC = 32
    PA, PB, QA, QB = 64, 96, 128, 160
    def reads(rr, A, B):
        def ra(a): return [f'ds_read_b64 v[{A+4*a+2*h}:{A+4*a+2*h+1}], v20 offset:{512*a+64*rr+8*h}' for h in range(2)]
        def rb(b): return [f'ds_read_b128 v[{B+4*b}:{B+4*b+3}], v21 offset:{512*(7-b)+64*rr}']
        r = rb(0)+ra(0)
        for b in range(1, 8): r += rb(b)
        for a in range(1, 8): r += ra(a)
        return r
    for r in reads(0, PA, PB): k(r)
    k('s_waitcnt lgkmcnt(0)')
    for rr in range(4):
        A, B = (PA, PB) if rr % 2 == 0 else (QA, QB)
        nA, nB = (QA, QB) if rr % 2 == 0 else (PA, PB)
        rd = reads(rr+1, nA, nB) if rr < 3 else []
        first = set()
        for a in range(8):
            for b in range(8-a):
                t = a+b
                d = CACC+4*t
                c = '0' if (rr == 0 and t not in first) else f'v[{d}:{d+3}]'
                first.add(t)
                k(f'v_mfma_f32_16x16x32_bf16 v[{d}:{d+3}], v[{A+4*a}:{A+4*a+3}], v[{B+4*b}:{B+4*b+3}], {c}')
                if rd: k(rd.pop(0))
        if rr < 3: k('s_waitcnt lgkmcnt(0)')
    k.mark(2)
    k.nop(8)
    k('s_cmp_eq_u32 s7, 0')
    k(f's_cbranch_scc0 L_{name}_hw1')
    def epi(keep, give, tag):
        for tau in range(4):
            d = CACC+4*(give+tau)
            k(f'ds_write_b128 v24, v[{d}:{d+3}] offset:{tau*1024}')
        for tau in range(4):
            k(f'ds_read_b64 v[{64+2*tau}:{65+2*tau}], v23 offset:{512*(3-tau)}')
        k('s_lshl_b32 s28, s5, 2')
        k('v_add_u32 v29, s28, v26')
        k('v_mov_b32 v30, 1')
        k('s_waitcnt lgkmcnt(0)')
        k(f'ds_write_b32 v29, v30 offset:{PAIR}')
        k('v_xor_b32 v29, 4, v29')
        k('s_waitcnt vmcnt(0)')
        k('v_lshlrev_b32 v13, 16, v13')
        for tau in range(4):
            u = 96+4*tau
            k(f'v_and_b32 v{u}, 0xffff0000, v{65+2*tau}')
            k(f'v_lshlrev_b32 v{u+1}, 16, v{65+2*tau}')
            k(f'v_and_b32 v{u+2}, 0xffff0000, v{64+2*tau}')
            k(f'v_lshlrev_b32 v{u+3}, 16, v{64+2*tau}')
        for tau in range(4):
            d = CACC+4*(keep+tau); u = 96+4*tau
            for r in range(4):
                k(f'v_fmac_f32 v{d+r}, v{u+r}, v13')
        lds_spin(k, f'{name}_pair{tag}', 29, PAIR, 1, 30)
        for tau in range(4):
            k(f'ds_read_b128 v[{80+4*tau}:{83+4*tau}], v25 offset:{tau*1024}')
        k('s_waitcnt lgkmcnt(0)')
        for tau in range(4):
            d = CACC+4*(keep+tau); p = 80+4*tau
            k(f'v_pk_add_f32 v[{d}:{d+1}], v[{d}:{d+1}], v[{p}:{p+1}]')
            k(f'v_pk_add_f32 v[{d+2}:{d+3}], v[{d+2}:{d+3}], v[{p+2}:{p+3}]')
            k(f'v_cvt_pk_bf16_f32 v{112+2*tau}, v{d}, v{d+1}')
            k(f'v_cvt_pk_bf16_f32 v{113+2*tau}, v{d+2}, v{d+3}')
            k(f'buffer_store_dwordx2 v[{112+2*tau}:{113+2*tau}], v22, s[{cSY}:{cSY+3}], 0 offen offset:{512*tau} sc1')
        k('v_readfirstlane_b32 s32, v28')
        k('s_cmp_lg_u32 s32, 0')
        k(f's_cbranch_scc1 L_{name}_nok{tag}')
        def ok():
            k('v_readfirstlane_b32 s32, v28')
            k('s_cmp_lg_u32 s32, 0')
        poll_loop(k, f'{name}_npoll{tag}', [f'buffer_load_dword v28, v27, s[{cSDBG}:{cSDBG+3}], 0 offen sc1'], ok)
        k.label(f'L_{name}_nok{tag}')
        k('v_mov_b32 v29, s31')
        k('v_mov_b32 v30, s32')
        k('s_waitcnt vmcnt(0)')
        k('s_mov_b64 exec, 1')
        k(f'buffer_store_dword v30, v29, s[{cSFL}:{cSFL+3}], 0 offen sc1')
        k.mark(3)
        k.end()
    epi(0, 4, 'a')
    k.label(f'L_{name}_hw1')
    epi(4, 0, 'b')

def write_nonce(k, sdbg):
    k('s_memrealtime s[64:65]')
    k('s_waitcnt lgkmcnt(0)')
    k('s_lshl_b32 s64, s64, 1')
    k('s_or_b32 s64, s64, 1')
    k('v_mov_b32 v30, s64')
    k('v_mov_b32 v29, 0')
    k('s_mov_b64 s[66:67], exec')
    k('s_mov_b64 exec, 1')
    k(f'buffer_store_dword v30, v29, s[{sdbg}:{sdbg+3}], 0 offen sc1')
    k('s_mov_b64 exec, s[66:67]')

def gen_k23(name='k23_kernel', stamp=None, NA=2, NB=7):
    k = K(name)
    k.stamp = stamp
    k('s_cmp_ge_u32 s2, 256')
    k(f's_cbranch_scc1 L_{name}_end')
    k.stamp_start()
    k('v_lshrrev_b32 v1, 6, v0')
    k('s_and_b32 s3, s2, 7')
    k('s_lshr_b32 s4, s2, 3')
    k('v_readfirstlane_b32 s5, v1')
    k('v_and_b32 v1, 63, v0')
    k('v_and_b32 v2, 15, v0')
    k('v_bfe_u32 v3, v0, 4, 2')
    k('s_cmp_ge_u32 s5, 4')
    k(f's_cbranch_scc1 L_{name}_g2')
    conv_load_ptrs(k)
    k(f'v_mov_b32 v8, {FLG}')
    k('v_lshlrev_b32 v9, 2, v1')
    k('v_add_u32 v8, v8, v9')
    k('v_mov_b32 v9, 0')
    k('s_cmp_eq_u32 s5, 0')
    k(f's_cbranch_scc0 L_{name}_noz')
    k('ds_write_b32 v8, v9')
    k.label(f'L_{name}_noz')
    conv_setup(k)
    k('s_waitcnt lgkmcnt(0)')
    conv_ptr_fix(k)
    k('s_barrier')
    k('s_cmp_eq_u32 s2, 0')
    k('s_cselect_b32 s28, s5, 1')
    k('s_cmp_eq_u32 s28, 0')
    k(f's_cbranch_scc0 L_{name}_non')
    write_nonce(k, cSDBG)
    k.label(f'L_{name}_non')
    conv_main(k, name)
    k.label(f'L_{name}_g2')
    k('s_sub_u32 s5, s5, 4')
    load_ptrs_g2(k)
    g2_setup(k)
    k('s_waitcnt lgkmcnt(0)')
    g2_ptr_fix(k)
    vq = VQ(k)
    g = G2(k, vq, NA, NB)
    g2_conv_head_load(k, vq)
    g2_conv_loads_U(k, vq)
    g2_conv_loads_H(k, vq, 0)
    g2_conv_loads_H(k, vq, 1)
    for kap in range(NBLK):
        g.dma(kap)
        if kap < NB: g.bload(kap)
    g2_zero_pad(k)
    k('s_barrier')
    vq.wait('head')
    k('ds_write_b16 v20, v25')
    vq.wait(['H0', 'H1', 'U'], lgkm=0)
    k(f'v_mov_b32 v26, {FLG}')
    k('v_mov_b32 v27, 1')
    k('s_mov_b64 exec, 1')
    k(f'ds_add_u32 v26, v27 offset:{RDY0}')
    k(f'ds_add_u32 v26, v27 offset:{RDY1}')
    k('s_mov_b64 exec, -1')
    for kap in range(NBLK, NB): g.bload(kap)
    g2_addr2(k)
    g2_epi_addr(k)
    k.mark(0)
    pre = NA - 1
    for kap in range(pre):
        vq.wait(f'W{kap}')
        for r in g.areads(kap): k(r)
    k.mark(1)
    if pre >= 1:
        k('s_waitcnt lgkmcnt(0)')
        for kap in range(pre): g.dma(NBLK+kap)
    g2_main(k, g, name, pre)
    k.label(f'L_{name}_end')
    k('s_endpgm')
    return k, (256 if stamp is not None else 248), LDS_BYTES, 512

if __name__ == '__main__':
    k, v, lds, blk = gen_k23()
    for p in check(k.lines, k.name): print(p)
```

```python
HF_OFF = 0
HF_BYTES = 32*56*4*1024
UT_OFF = 0x800000
YT_OFF = 0xA00000
G_OFF  = 0xC00000
FL_OFF = 0xC10000
FL_BYTES = 16384
HFF = 0
UTF = 4096
YTF = 8192

H1B  = 0
BLK0 = 16640
NBLK = 6
RB   = BLK0 + NBLK*16384
H0B  = RB + 16384
U0B  = H0B + 16640
U1B  = U0B + 4608
FLG  = U1B + 4608
LDS_BYTES = FLG + 256
RDY0, RDY1 = 0, 4
PAIR = 8
NONCE = 32

def srd_consts(k, base, nbytes):
    k(f's_mov_b32 s{base+2}, {nbytes}')
    k(f's_mov_b32 s{base+3}, 0x00020000')

class VQ:
    def __init__(self, k):
        self.k = k
        self.ops = []
        self.done = 0
    def issue(self, text, tag=None):
        self.k(text)
        self.ops.append(tag)
        assert len(self.ops) - self.done <= 63, 'vmcnt overflow risk'
    def need(self, tag):
        tags = tag if isinstance(tag, (list, tuple, set)) else [tag]
        idx = -1
        for i, t in enumerate(self.ops):
            if t in tags: idx = i
        assert idx >= 0, f'tag {tag} never issued'
        if idx < self.done: return None
        return len(self.ops) - 1 - idx
    def wait(self, tag, lgkm=None):
        n = self.need(tag)
        parts = []
        if n is not None:
            parts.append(f'vmcnt({n})')
            self.done = len(self.ops) - n
        if lgkm is not None: parts.append(f'lgkmcnt({lgkm})')
        if parts: self.k('s_waitcnt ' + ' '.join(parts))
    def drain(self, lgkm=None):
        s = 's_waitcnt vmcnt(0)'
        if lgkm is not None: s += f' lgkmcnt({lgkm})'
        self.k(s)
        self.done = len(self.ops)
```

```python
import sys
from asmlib import *
import importlib

HEADER = open('gated_mix__ssm_conv_h3__dense_activation_squared_relu__prompt.s.ref').read().split('; Override launch')[0]

def build(parts, path):
    out = [HEADER.rstrip('\n')]
    for k, v, lds, blk, grid in parts:
        out.append(f'; @launch kernel={k.name} grid=({grid},1,1) block=({blk},1,1) lds={lds}')
    out.append('.amdgcn_target "amdgcn-amd-amdhsa--gfx950"')
    out.append('.text')
    nprob = 0
    for k, v, lds, blk, grid in parts:
        for p in check(k.lines, k.name):
            print('HAZARD', p); nprob += 1
        out.append(kernel_text(k))
    out.append('.section .rodata,"a"')
    for k, v, lds, blk, grid in parts:
        out.append(descriptor(k.name, v))
    open(path, 'w').write('\n'.join(out) + '\n')
    return nprob

if __name__ == '__main__':
    which = sys.argv[1] if len(sys.argv) > 1 else 'all'
    path = sys.argv[2] if len(sys.argv) > 2 else 'cur.s'
    parts = []
    st = len(sys.argv) > 3 and sys.argv[3] == 'stamp'
    import k1
    kk, v, lds, blk = k1.gen_k1(stamp=0 if st else None)
    parts.append((kk, v, lds, blk, 256))
    if which in ('all', 'k12'):
        import k2
        kk, v, lds, blk = k2.gen_k2(stamp=1 if st else None)
        parts.append((kk, v, lds, blk, 256))
    if which == 'all':
        import k3
        kk, v, lds, blk = k3.gen_k3(stamp=2 if st else None)
        parts.append((kk, v, lds, blk, 256))
    if which == 'two':
        import k23
        NA = int(sys.argv[4]) if len(sys.argv) > 4 else 2
        NB = int(sys.argv[5]) if len(sys.argv) > 5 else 7
        kk, v, lds, blk = k23.gen_k23(stamp=1 if st else None, NA=NA, NB=NB)
        parts.append((kk, v, lds, blk, 256))
    n = build(parts, path)
    print('wrote', path, 'hazards', n)
```
